```python
import torch

def _softmax(x, axis=-1):
    return torch.softmax(x, dim=axis)
def _gelu(x):
    return torch.nn.functional.gelu(x, approximate="tanh")
def _silu(x):
    return torch.nn.functional.silu(x)
def _sigmoid(x):
    return torch.sigmoid(x)
def _layernorm(x, axis=-1, eps=1e-5):
    m = x.mean(dim=axis, keepdim=True)
    v = x.var(dim=axis, keepdim=True, unbiased=False)
    return (x - m) / torch.sqrt(v + eps)
def _scatter_add(tgt, idx, src, axis=0):
    return tgt.clone().index_add_(axis, idx, src)
def _segment_sum(src, seg, n):
    out = torch.zeros((n,) + src.shape[1:], dtype=src.dtype)
    return out.index_add_(0, seg, src)
def _pad(x, pw):
    flat = tuple(v for pair in reversed(pw) for v in pair)
    return torch.nn.functional.pad(x, flat)

kernel_name = 'recurrent_scan__gqa_block_cached__glu_gated_reglu__decode'

def setup_inputs():

    _w = (lambda a: (lambda t: t.to(torch.bfloat16) if t.is_floating_point() else t)(torch.as_tensor(a)))
    def _A_setup():
        B, Sq, D = 2, 1, 512
        Hq, Hkv, Sk, Dh = 32, 8, 32768, 128
        assert Hq % Hkv == 0, (Hq, Hkv)
        return {
            "x": _w((lambda *s: torch.randn(*s, dtype=torch.bfloat16) * 0.4)(B, Sq, D)),
            "k_cache": _w((lambda *s: torch.randn(*s, dtype=torch.bfloat16) * 1.6)(B, Hkv, Sk, Dh)),
            "v_cache": _w((lambda *s: torch.randn(*s, dtype=torch.bfloat16) * 1.6)(B, Hkv, Sk, Dh)),
            "wq": _w((lambda *s: torch.randn(*s, dtype=torch.bfloat16) * 1.6)(D, Hq * Dh) * (D ** -0.5)),
            "wo": _w((lambda *s: torch.randn(*s, dtype=torch.bfloat16) * 1.6)(Hq * Dh, D) * ((Hq * Dh) ** -0.5)),
        }
    _A_in = _A_setup()

    def _B_setup():
        B, S, D, F = 2, 1, 512, 1792
        return {
            "x": _w((lambda *s: torch.randn(*s, dtype=torch.bfloat16) * 0.4)(B, S, D)),
            "W_gate": _w((lambda *s: torch.randn(*s, dtype=torch.bfloat16) * 1.6)(D, F) * (2.0 / D) ** 0.5),
            "W_up": _w((lambda *s: torch.randn(*s, dtype=torch.bfloat16) * 1.6)(D, F) * (2.0 / D) ** 0.5),
            "W_down": _w((lambda *s: torch.randn(*s, dtype=torch.bfloat16) * 1.6)(F, D) * (1.0 / F) ** 0.5),
        }
    _B_in = _B_setup()

    return {
        "A_x": _A_in["x"],
        "A_k_cache": _A_in["k_cache"],
        "A_v_cache": _A_in["v_cache"],
        "A_wq": _A_in["wq"],
        "A_wo": _A_in["wo"],
        "B_x": _B_in["x"],
        "B_W_gate": _B_in["W_gate"],
        "B_W_up": _B_in["W_up"],
        "B_W_down": _B_in["W_down"],
    }

def reference(A_x, A_k_cache, A_v_cache, A_wq, A_wo, B_x, B_W_gate, B_W_up, B_W_down):
    def _A_ref(x, k_cache, v_cache, wq, wo):
        B, Sq, D = x.shape
        Hq, Dh = 32, 128
        Hkv = k_cache.shape[1]
        rep = Hq // Hkv
        q = (lambda x, *d: x.permute(*d))((x @ wq).reshape(B, Sq, Hq, Dh), 0, 2, 1, 3)
        k = (lambda x, n, axis: torch.repeat_interleave(x, n, dim=axis))(k_cache, rep, axis=1)
        v = (lambda x, n, axis: torch.repeat_interleave(x, n, dim=axis))(v_cache, rep, axis=1)
        scores = torch.einsum("bhqd,bhkd->bhqk", q, k) * (Dh ** -0.5)
        p = _softmax(scores, axis=-1)
        o = torch.einsum("bhqk,bhkd->bhqd", p, v)
        return (lambda x, *d: x.permute(*d))(o, 0, 2, 1, 3).reshape(B, Sq, Hq * Dh) @ wo

    def _B_ref(x, W_gate, W_up, W_down):
        gate = torch.einsum("bsd,df->bsf", x, W_gate)
        up = torch.einsum("bsd,df->bsf", x, W_up)
        gate = gate * (lambda x, dt: x.to(dt))(gate > 0, gate.dtype)
        h = gate * up
        return torch.einsum("bsf,fd->bsd", h, W_down)

    x = A_x
    xn = _layernorm(x, axis=-1)
    s = _A_ref(xn, A_k_cache, A_v_cache, A_wq, A_wo)
    g = _silu(_B_ref(xn, B_W_gate, B_W_up, B_W_down))
    return x + s * g
```

```python
import re

TRANS = ("v_exp_f32", "v_log_f32", "v_rcp_f32", "v_rsq_f32", "v_sqrt_f32")

def regs_of(tok):
    tok = tok.strip()
    tok = tok.lstrip("-")
    if tok.startswith("abs(") and tok.endswith(")"): tok = tok[4:-1]
    if tok.startswith("|") and tok.endswith("|"): tok = tok[1:-1]
    m = re.fullmatch(r"([vsa])(\d+)", tok)
    if m: return {(m.group(1), int(m.group(2)))}
    m = re.fullmatch(r"([vsa])\[(\d+):(\d+)\]", tok)
    if m: return {(m.group(1), i) for i in range(int(m.group(2)), int(m.group(3)) + 1)}
    if tok in ("vcc", "vcc_lo", "vcc_hi"): return {("s", "vcc")}
    if tok in ("exec", "exec_lo", "exec_hi"): return {("s", "exec")}
    return set()

class Ins:
    def __init__(self, text, counted=True):
        self.text = text; self.counted = counted
        t = text.split(";")[0].strip()
        self.label = t.endswith(":") or t.startswith(".") or t == ""
        self.op = ""; self.w = set(); self.r = set(); self.srcc = set(); self.ab = set(); self.stdata = set()
        if self.label: return
        parts = t.split(None, 1); self.op = op = parts[0]
        rest = parts[1] if len(parts) > 1 else ""
        ops = [o.strip() for o in re.split(r",(?![^\[]*\])", rest)] if rest else []
        if ops:
            last = ops[-1].split()
            ops[-1] = last[0] if last else ""
        self.ops = ops
        self.dpp = "_dpp" in op or " row_" in t or "quad_perm" in t
        self.valu = op.startswith("v_") and not op.startswith("v_mfma")
        self.mfma = op.startswith("v_mfma")
        self.vmem = op.startswith(("buffer_", "global_", "flat_"))
        self.ds = op.startswith("ds_")
        self.perml = op.startswith("v_permlane")
        self.trans = op.replace("_e32", "").replace("_e64", "") in TRANS
        self.rdlane = op.startswith(("v_readlane", "v_readfirstlane"))
        R = [regs_of(o) for o in ops]
        if self.mfma:
            self.w = R[0]; self.ab = R[1] | R[2]; self.srcc = R[3]; self.r = self.ab | self.srcc
        elif self.perml:
            self.w = R[0] | R[1]; self.r = R[0] | R[1]
        elif self.valu:
            self.w = set(R[0]); k = 1
            if op.startswith(("v_add_co", "v_addc_co", "v_sub_co")): self.w |= R[1]; k = 2
            for x in R[k:]: self.r |= x
            if op.startswith(("v_fmac", "v_dot2c")) or self.dpp: self.r |= R[0]
            if op.startswith("v_cndmask") and len(ops) == 3: self.r |= {("s", "vcc")}
        elif self.vmem:
            if "load" in op and " lds" not in t:
                self.w = R[0]
                for x in R[1:]: self.r |= x
            elif "atomic" in op and " sc0" in t and op.startswith("global"):
                self.w = R[0]
                for x in R[1:]: self.r |= x
            else:
                for x in R: self.r |= x
                if op.endswith(("x3", "x4")):
                    self.stdata = R[0] if op.startswith("buffer") else R[1]
        elif self.ds:
            if "read" in op or "rtn" in op or "permute" in op or "swizzle" in op:
                self.w = R[0]
                for x in R[1:]: self.r |= x
            else:
                for x in R: self.r |= x
        elif op.startswith("s_"):
            if op.startswith(("s_cmp", "s_cbranch", "s_branch", "s_waitcnt", "s_nop", "s_barrier", "s_sleep", "s_endpgm", "s_setprio", "s_bitcmp")):
                for x in R: self.r |= x
            else:
                if R: self.w = set(R[0])
                for x in R[1:]: self.r |= x
    def states(self):
        if self.label or not self.counted: return 0
        if self.op == "s_nop": return int(self.ops[0]) + 1
        return 1

def vonly(s): return {x for x in s if x[0] in "va"}
def sonly(s): return {x for x in s if x[0] == "s"}

def need(p, c):
    n = 0
    if p.label or c.label: return 0
    pv = vonly(p.w)
    if p.valu:
        if c.mfma and pv & c.r: n = max(n, 2)
        if c.valu and c.dpp and pv & vonly(c.r): n = max(n, 2)
        if c.perml and pv & c.r: n = max(n, 2)
        if c.rdlane and pv & c.r: n = max(n, 1)
        if p.trans and c.valu and not c.trans and pv & c.r: n = max(n, 1)
        if p.trans and c.valu and c.trans and pv & c.r: n = max(n, 1)
        ps = sonly(p.w)
        if ps:
            if c.valu and ps & c.r: n = max(n, 4 if c.rdlane else 2)
            if c.vmem and ps & c.r: n = max(n, 5)
            if c.op.startswith("s_") and ps & c.r: n = max(n, 1)
    if p.mfma:
        if c.mfma:
            if pv & c.ab: n = max(n, 8)
            if pv & c.srcc and pv != c.srcc: n = max(n, 6)
            if pv & vonly(c.w) and pv != c.srcc: n = max(n, 6)
        elif (c.valu or c.vmem or c.ds) and pv & (c.r | c.w): n = max(n, 8)
        if c.valu and p.srcc & vonly(c.w): n = max(n, 3)
    if p.stdata and (c.valu or c.mfma) and p.stdata & c.w: n = max(n, 2)
    if p.stdata and (c.vmem or c.ds) and p.stdata & c.w: n = max(n, 1)
    return n

class Asm:
    def __init__(self):
        self.L = []; self.counted = True; self.nops = 0
    def __call__(self, text):
        for line in text.split("\n"):
            line = line.strip()
            if not line: continue
            ins = Ins(line, self.counted)
            if not ins.label:
                dist = 0; req = 0
                for p in reversed(self.L):
                    if dist >= 12: break
                    r = need(p, ins) - dist
                    if r > req: req = r
                    dist += p.states()
                if req > 0:
                    self.L.append(Ins(f"s_nop {req-1}", self.counted)); self.nops += req
            self.L.append(ins)
    def check_edge(self, from_idx, to_label):
        j = [i for i, x in enumerate(self.L) if x.text == to_label + ":"][0]
        tail = self.L[:from_idx + 1]
        d0 = 0
        for c in self.L[j:j + 30]:
            if d0 >= 12: break
            dist = d0
            for p in reversed(tail):
                if dist >= 12: break
                if need(p, c) > dist: raise Exception(f"edge hazard {p.text} -> {c.text} dist {dist}")
                dist += p.states() if p.counted else 0
            d0 += c.states()
    def check_all_edges(self):
        for i, x in enumerate(self.L):
            if x.op.startswith(("s_cbranch", "s_branch")):
                self.check_edge(i, x.ops[0])
    def text(self):
        out = []
        for x in self.L:
            out.append(x.text if x.label else "    " + x.text)
        return "\n".join(out) + "\n"
```

```python
import sys, argparse
from asmlib import Asm
NAME = "recurrent_scan__gqa_block_cached__glu_gated_reglu__decode"

HEADER = open("cdna_kernels/" + NAME + ".s.ref").read().split("; Override launch")[0]

WS_QP = 0x0
WS_CLR = 0x80000
WS_H1 = 0x80000
WS_ML = 0x100000
WS_H2 = 0x110000
WS_F = 0x130000
L_CNT = 0; L_Q = 256; L_ML = 1280; L_YR = 2048; L_OP = 4096; L_FP = 12288; L_HP = 20480; L_SIZE = 24576

def gen(stamps=False, mimic=True, thr=4, spin=1 << 16, sset=0, qsleep=0):
    A = Asm()
    nst = [0]
    def stamp(i, sets=None):
        if stamps and (sets is None or sset in sets): A(f"s_memrealtime s[{64+2*i}:{65+2*i}]")
    def vr(a, n): return f"v[{a}:{a+n-1}]"
    lab = [0]
    def newlab(p):
        lab[0] += 1; return f"L_{p}{lab[0]}"

    A(f"{NAME}_kernel:")
    stamp(0)
    A("s_cmp_ge_u32 s2, 256\ns_cbranch_scc1 L_exit")
    A("s_load_dwordx16 s[8:23], s[0:1], 0\ns_load_dwordx8 s[24:31], s[0:1], 64")
    A("v_lshrrev_b32 v4, 6, v0\nv_and_b32 v1, 63, v0\nv_mov_b32 v6, 0\nv_readfirstlane_b32 s3, v4\nv_mov_b32 v7, 0")
    A("ds_write_b64 v6, v[6:7]")
    A("s_and_b32 s32, s2, 7\ns_bfe_u32 s33, s2, 0x10003\ns_lshr_b32 s34, s2, 4\ns_lshl_b32 s35, s33, 3\ns_add_u32 s35, s35, s32")
    A("v_lshrrev_b32 v2, 4, v1\nv_and_b32 v3, 15, v1")
    A("s_mov_b32 s49, 0x05040100\ns_mov_b32 s50, 0x07060302\ns_mov_b32 s51, 0xffff0000\ns_mov_b32 s53, 0x3fb8aa3b")
    A("s_mov_b32 s39, 0x20000\ns_mov_b32 s43, 0x20000")
    A("s_cmp_ge_u32 s3, 4\ns_cbranch_scc1 L_aux")

    Q, P, M, Lr, S, TD, D, O, T, RING = 4, 8, 12, 13, 20, 28, 32, 48, 80, 112
    def KB(x, s): return RING + 64 * x + 4 * s
    def VB(x, s): return RING + 64 * x + 32 + 4 * s
    A("s_lshl_b32 s54, s35, 4\ns_add_u32 s54, s54, s34\ns_lshl_b32 s54, s54, 19")
    A("s_lshl_b32 s55, s3, 11")
    A("v_lshrrev_b32 v14, 2, v3\nv_lshlrev_b32 v14, 8, v14\nv_and_b32 v15, 3, v1\nv_lshlrev_b32 v15, 4, v15")
    A("v_lshl_add_u32 v14, v2, 6, v14\nv_add3_u32 v14, v14, v15, s55")
    A("v_lshl_add_u32 v15, v1, 4, s55")
    A("s_mov_b32 s38, 0x80000\ns_mov_b32 s42, 0x80000")
    A("s_mov_b32 s44, 0\ns_mov_b32 s45, 0x2000\ns_mov_b32 s46, 0x4000\ns_mov_b32 s47, 0x6000")
    A("s_waitcnt lgkmcnt(0)")
    A("s_add_u32 s36, s10, s54\ns_addc_u32 s37, s11, 0\ns_and_b32 s37, s37, 0xffff")
    A("s_add_u32 s40, s12, s54\ns_addc_u32 s41, s13, 0\ns_and_b32 s41, s41, 0xffff")
    VK, VV = "v14", "v15"
    def issue(x, kv, t):
        for u in range(2):
            r = (KB if kv == 0 else VB)(x, 2 * t + u)
            A(f"buffer_load_dwordx4 {vr(r,4)}, {VK if kv == 0 else VV}, {'s[36:39]' if kv == 0 else 's[40:43]'}, s{44+t} offen offset:{u*1024} nt")
    def adv():
        for t in range(4): A(f"s_add_u32 s{44+t}, s{44+t}, 0x8000")
    n = 0
    for x in range(2):
        for kv in range(2):
            for t in range(4):
                if 2 * n > thr: A(f"s_waitcnt vmcnt({thr})")
                issue(x, kv, t); n += 1
                if 2 * n == thr + 2:
                    A("s_barrier")
                    for i in range(32): A(f"v_mov_b32 v{O+i}, 0")
                    A(f"v_mov_b32 v{M}, 0xff7fffff\nv_mov_b32 v{Lr}, 0")
                    A("v_and_b32 v16, 3, v1\nv_lshlrev_b32 v16, 8, v16\nv_lshrrev_b32 v17, 2, v1\nv_lshl_add_u32 v16, v17, 4, v16")
                    A("s_mov_b32 s52, 0x3db504f3\ns_mov_b32 s48, 0")
        adv()
    stamp(1)
    A("s_barrier")
    A(f"ds_read_b128 {vr(Q,4)}, v16 offset:{L_Q}")
    A("s_mov_b64 vcc, 0")
    A("s_waitcnt lgkmcnt(0)")
    stamp(2)
    A("L_loop:")
    def dpp(k):
        d0 = D + 8 * (k & 1); d1 = d0 + 4
        A(f"v_add_f32_dpp v{TD}, v{d0+3}, v{d0+2} row_shl:4 row_mask:0xf bank_mask:0xf bound_ctrl:0")
        A(f"v_add_f32_dpp v{TD+1}, v{d1+3}, v{d1+2} row_shl:4 row_mask:0xf bank_mask:0xf bound_ctrl:0")
        A(f"v_add_f32_dpp v{TD+2}, v{d0+1}, v{d0} row_shl:4 row_mask:0xf bank_mask:0xf bound_ctrl:0")
        A(f"v_add_f32_dpp v{TD+3}, v{d1+1}, v{d1} row_shl:4 row_mask:0xf bank_mask:0xf bound_ctrl:0")
    def dpp2(k):
        A(f"v_add_f32_dpp v{S+2*k}, v{TD}, v{TD+2} row_shl:8 row_mask:0xf bank_mask:0xf bound_ctrl:0")
        A(f"v_add_f32_dpp v{S+2*k+1}, v{TD+1}, v{TD+3} row_shl:8 row_mask:0xf bank_mask:0xf bound_ctrl:0")
    def rnd(k):
        a, b = S + 2 * k, S + 2 * k + 1
        if mimic:
            A(f"v_cvt_pk_bf16_f32 v16, v{a}, v{b}\nv_lshlrev_b32 v{a}, 16, v16\nv_and_b32 v{b}, s51, v16")
            A(f"v_mul_f32 v{a}, s52, v{a}\nv_mul_f32 v{b}, s52, v{b}")
            A(f"v_cvt_pk_bf16_f32 v16, v{a}, v{b}\nv_lshlrev_b32 v{a}, 16, v16\nv_and_b32 v{b}, s51, v16")
        else:
            A(f"v_mul_f32 v{a}, s52, v{a}\nv_mul_f32 v{b}, s52, v{b}")
    def perms(x, t, lo=0, hi=4):
        for d in range(lo, hi):
            A(f"v_perm_b32 v{T+4*(2*d)+t}, v{VB(x,2*t+1)+d}, v{VB(x,2*t)+d}, s49")
            A(f"v_perm_b32 v{T+4*(2*d+1)+t}, v{VB(x,2*t+1)+d}, v{VB(x,2*t)+d}, s50")
    def tail(x, kv, t, lastwait=None):
        l1 = newlab("sk")
        A(f"s_cbranch_vccnz {l1}")
        A.counted = False
        A(f"s_waitcnt vmcnt({thr})")
        issue(x, kv, t)
        if lastwait is not None:
            l2 = newlab("jn")
            A(f"s_branch {l2}\n{l1}:\ns_waitcnt vmcnt({lastwait})\n{l2}:")
        else:
            A(f"{l1}:")
        A.counted = True
    nfl = thr // 2 + 1
    def lastw(x, k):
        if x == 0 or k == 7: return None
        rem = 7 - (k + 1)
        return 2 * rem if rem < nfl else None
    for x in range(2):
        for k in range(4):
            d0 = D + 8 * (k & 1)
            if k > 0: dpp(k - 1)
            A(f"v_mfma_f32_16x16x32_bf16 {vr(d0,4)}, {vr(KB(x,2*k),4)}, {vr(Q,4)}, 0")
            A(f"v_mfma_f32_16x16x32_bf16 {vr(d0+4,4)}, {vr(KB(x,2*k+1),4)}, {vr(Q,4)}, 0")
            if k > 0: dpp2(k - 1); rnd(k - 1)
            tail(x, 0, k, lastw(x, k))
        perms(x, 0)
        dpp(3)
        A(f"v_max3_f32 v17, v{S}, v{S+1}, v{S+2}\nv_max3_f32 v17, v17, v{S+3}, v{S+4}")
        dpp2(3); rnd(3)
        A(f"v_max3_f32 v17, v17, v{S+5}, v{S+6}\nv_max_f32 v17, v17, v{S+7}")
        tail(x, 1, 0, lastw(x, 4))
        A("v_mov_b32 v18, v17")
        perms(x, 1, 0, 1)
        A("v_permlane32_swap_b32 v17, v18\nv_max_f32 v17, v17, v18\nv_mov_b32 v18, v17")
        perms(x, 1, 1, 2)
        A("v_permlane16_swap_b32 v17, v18\nv_max_f32 v17, v17, v18\nv_mul_f32 v17, s53, v17")
        A(f"v_max_f32 v17, v17, v{M}\nv_sub_f32 v18, v{M}, v17\nv_mov_b32 v{M}, v17\nv_exp_f32 v18, v18")
        for i in range(8): A(f"v_fma_f32 v{S+i}, v{S+i}, s53, -v17")
        for i in range(8): A(f"v_exp_f32 v{S+i}, v{S+i}")
        perms(x, 1, 2, 4)
        tail(x, 1, 1, lastw(x, 5))
        for i in range(4): A(f"v_cvt_pk_bf16_f32 v{P+i}, v{S+2*i}, v{S+2*i+1}")
        A(f"v_fma_f32 v{Lr}, v{Lr}, v18, v{S}")
        A(f"v_add_f32 v{S+1}, v{S+1}, v{S+2}\nv_add_f32 v{S+3}, v{S+3}, v{S+4}\nv_add_f32 v{S+5}, v{S+5}, v{S+6}")
        A(f"v_add_f32 v{Lr}, v{Lr}, v{S+7}\nv_add_f32 v{S+1}, v{S+1}, v{S+3}\nv_add_f32 v{Lr}, v{Lr}, v{S+5}\nv_add_f32 v{Lr}, v{Lr}, v{S+1}")
        for i in range(16): A(f"v_pk_mul_f32 {vr(O+2*i,2)}, {vr(O+2*i,2)}, v[18:19] op_sel_hi:[1,0]")
        perms(x, 2)
        tail(x, 1, 2, lastw(x, 6))
        perms(x, 3)
        for e in range(8):
            A(f"v_mfma_f32_16x16x32_bf16 {vr(O+4*e,4)}, {vr(T+4*e,4)}, {vr(P,4)}, {vr(O+4*e,4)}")
        tail(x, 1, 3)
        adv()
    A("s_add_u32 s48, s48, 1\ns_cmp_eq_u32 s48, 7\ns_cselect_b64 vcc, -1, 0\ns_cmp_lt_u32 s48, 8\ns_cbranch_scc1 L_loop")
    stamp(3)
    A(f"v_mov_b32 v18, v{Lr}\nv_lshlrev_b32 v16, 9, v3\nv_lshl_add_u32 v16, v2, 7, v16\nv_permlane32_swap_b32 v{Lr}, v18\nv_add_f32 v{Lr}, v{Lr}, v18")
    A(f"v_mov_b32 v18, v{Lr}\nv_add_u32 v16, s55, v16\ns_lshl_b32 s56, s3, 3\nv_lshlrev_b32 v17, 5, v3\nv_permlane16_swap_b32 v{Lr}, v18\nv_add_f32 v{Lr}, v{Lr}, v18")
    A("v_add_u32 v17, s56, v17")
    A("s_mov_b32 exec_lo, 0x000f000f\ns_mov_b32 exec_hi, 0x000f000f")
    for e in range(8): A(f"ds_write_b128 v16, {vr(O+4*e,4)} offset:{L_OP+16*e}")
    A(f"ds_write_b64 v17, {vr(M,2)} offset:{L_ML}")
    A("s_waitcnt lgkmcnt(0)")
    A("s_barrier")
    if stamps:
        stamp(4); stamp(5); stamp(6); A("s_branch L_stamps")
    else:
        A("s_endpgm")

    XA, XB, AO, WQ, WO, T, D, WT, UP, U = 8, 16, 20, 32, 64, 96, 128, 160, 192, 224
    A("L_aux:")
    A("s_sub_u32 s4, s3, 4")
    A("s_lshr_b32 s5, s34, 2\ns_and_b32 s6, s34, 3")
    A("s_lshl_b32 s7, s5, 2\ns_add_u32 s7, s7, s4")
    A("v_lshlrev_b32 v4, 5, v1")
    A("s_lshl_b32 s54, s33, 10\ns_lshl_b32 s55, s7, 6\ns_add_u32 s54, s54, s55\nv_lshl_add_u32 v5, v2, 4, s54")
    A("v_lshlrev_b32 v24, 4, v3\nv_lshl_add_u32 v6, v2, 16, v24\nv_lshl_add_u32 v7, v2, 11, v24")
    A("s_lshl_b32 s44, s7, 18\ns_lshl_b32 s55, s32, 10\ns_add_u32 s44, s44, s55\ns_lshl_b32 s55, s6, 8\ns_add_u32 s44, s44, s55")
    A("s_lshl_b32 s45, s32, 4\ns_add_u32 s45, s45, s7\ns_lshl_b32 s45, s45, 15\ns_add_u32 s45, s45, s55")
    A("s_mov_b32 s38, 0x400000\ns_mov_b32 s42, 0x400000")
    A("s_waitcnt lgkmcnt(0)")
    A(f"global_load_dwordx4 {vr(XA,4)}, v4, s[8:9]\nglobal_load_dwordx4 {vr(XA+4,4)}, v4, s[8:9] offset:16\nglobal_load_dwordx4 {vr(XB,4)}, v5, s[8:9]")
    A("s_mov_b32 s36, s14\ns_and_b32 s37, s15, 0xffff\ns_mov_b32 s40, s16\ns_and_b32 s41, s17, 0xffff")
    for s in range(8):
        A(f"buffer_load_dwordx4 {vr(WQ+4*s,4)}, v6, s[36:39], s44 offen nt")
        if s < 7: A("s_add_u32 s44, s44, 0x2000")
    for s in range(4):
        A(f"buffer_load_dwordx4 {vr(WO+4*s,4)}, v7, s[40:43], s45 offen nt")
        A(f"buffer_load_dwordx4 {vr(WO+4*(s+4),4)}, v7, s[40:43], s45 offen offset:1024 nt")
        if s < 3: A("s_add_u32 s45, s45, 0x2000")
    A(f"s_lshl_b32 s54, s2, 2\ns_add_u32 s54, s54, s4\ns_mul_i32 s54, s54, 768\ns_add_u32 s54, s54, {WS_CLR}")
    A("v_lshl_add_u32 v28, v1, 4, s54\nv_mov_b32 v24, -1\nv_mov_b32 v25, -1\nv_mov_b32 v26, -1\nv_mov_b32 v27, -1")
    A("s_mov_b32 exec_hi, 0xffff\nglobal_store_dwordx4 v28, v[24:27], s[30:31] sc1\ns_mov_b32 exec_hi, -1")
    A("s_barrier")
    A("s_waitcnt vmcnt(18)")
    stamp(1, [0])
    for d in range(8):
        A(f"v_lshlrev_b32 v{U+2*d}, 16, v{XA+d}\nv_and_b32 v{U+2*d+1}, s51, v{XA+d}")
    def allred32(r, t):
        for n_ in (8, 4, 2, 1): A(f"v_add_f32_dpp v{r}, v{r}, v{r} row_ror:{n_} row_mask:0xf bank_mask:0xf")
        A(f"v_mov_b32 v{t}, v{r}\nv_permlane16_swap_b32 v{r}, v{t}\nv_add_f32 v{r}, v{r}, v{t}")
    for d in range(4): A(f"v_pk_add_f32 {vr(XA+2*d,2)}, {vr(U+4*d,2)}, {vr(U+4*d+2,2)}")
    A(f"v_pk_add_f32 {vr(XA,2)}, {vr(XA,2)}, {vr(XA+2,2)}\nv_pk_add_f32 {vr(XA+4,2)}, {vr(XA+4,2)}, {vr(XA+6,2)}")
    A(f"v_pk_add_f32 {vr(XA,2)}, {vr(XA,2)}, {vr(XA+4,2)}\nv_add_f32 v24, v{XA}, v{XA+1}")
    allred32(24, 25)
    A("v_mul_f32 v24, 0x3b000000, v24")
    for d in range(16): A(f"v_sub_f32 v{U+d}, v{U+d}, v24")
    A(f"v_mul_f32 v26, v{U}, v{U}\nv_mul_f32 v27, v{U+1}, v{U+1}")
    for d in range(2, 16): A(f"v_fmac_f32 v{26+(d&1)}, v{U+d}, v{U+d}")
    A("v_add_f32 v26, v26, v27")
    allred32(26, 25)
    A("v_mul_f32 v26, 0x3b000000, v26")
    A("v_cvt_pk_bf16_f32 v24, v24, v26\nv_and_b32 v26, s51, v24\nv_lshlrev_b32 v24, 16, v24")
    A("v_add_f32 v26, 0x3727c5ac, v26\nv_cvt_pk_bf16_f32 v26, v26, v26\nv_and_b32 v26, s51, v26")
    A("v_sqrt_f32 v26, v26\nv_cvt_pk_bf16_f32 v26, v26, v26\nv_and_b32 v26, s51, v26\nv_rcp_f32 v26, v26")
    A("v_readlane_b32 s60, v24, 0\nv_readlane_b32 s62, v24, 32\nv_readlane_b32 s61, v26, 0\nv_readlane_b32 s63, v26, 32")
    A("s_cmp_eq_u32 s33, 0\ns_cselect_b32 s54, s60, s62\ns_cselect_b32 s55, s61, s63")
    A("v_mov_b32 v30, s54\nv_mov_b32 v31, s55")
    def normalize(src, dst):
        for d in range(4): A(f"v_lshlrev_b32 v{U+2*d}, 16, v{src+d}\nv_and_b32 v{U+2*d+1}, s51, v{src+d}")
        for d in range(8): A(f"v_sub_f32 v{U+d}, v{U+d}, v30")
        for d in range(4): A(f"v_cvt_pk_bf16_f32 v{dst+d}, v{U+2*d}, v{U+2*d+1}")
        for d in range(4): A(f"v_lshlrev_b32 v{U+2*d}, 16, v{dst+d}\nv_and_b32 v{U+2*d+1}, s51, v{dst+d}")
        for d in range(8): A(f"v_mul_f32 v{U+d}, v{U+d}, v31")
        for d in range(4): A(f"v_cvt_pk_bf16_f32 v{dst+d}, v{U+2*d}, v{U+2*d+1}")
    def permtile(src, dst):
        for d in range(4):
            for t in range(4):
                A(f"v_perm_b32 v{dst+4*(2*d)+t}, v{src+4*(2*t+1)+d}, v{src+4*(2*t)+d}, s49")
            for t in range(4):
                A(f"v_perm_b32 v{dst+4*(2*d+1)+t}, v{src+4*(2*t+1)+d}, v{src+4*(2*t)+d}, s50")
    def mfmatile(acc, a, w, zero):
        for e in range(8):
            A(f"v_mfma_f32_16x16x32_bf16 {vr(acc+4*e,4)}, {vr(a,4)}, {vr(w+4*e,4)}, {'0' if zero else vr(acc+4*e,4)}")
    def row0_write(addr, acc, r, off):
        for e in range(0, 8, 2):
            A(f"ds_write2_b32 v{addr}, v{acc+4*e+r}, v{acc+4*(e+1)+r} offset0:{off//4+e} offset1:{off//4+e+1}")
    A("s_waitcnt vmcnt(17)")
    normalize(XB, AO)
    A("s_waitcnt vmcnt(9)")
    stamp(2, [0]); stamp(1, [1])
    permtile(WQ, T)
    mfmatile(D, AO, T, True)
    A(f"s_lshl_b32 s54, s4, 9\ns_add_u32 s54, s54, {L_YR}\nv_lshl_add_u32 v29, v3, 5, s54")
    A("v_mov_b32 v24, 0\nv_mov_b32 v25, 1\nv_lshlrev_b32 v28, 3, v1")
    A("s_mov_b64 exec, 0xffff")
    row0_write(29, D, 0, 0)
    A("s_mov_b64 exec, 1")
    A("s_waitcnt vmcnt(0) lgkmcnt(0)")
    stamp(2, [1]); stamp(3, [1]); stamp(4, [1]); stamp(5, [1])
    A(f"ds_add_rtn_u32 v26, v24, v25 offset:{L_CNT}")
    A("s_waitcnt lgkmcnt(0)")
    A("v_readfirstlane_b32 s54, v26\ns_mov_b64 exec, -1\ns_cmp_eq_u32 s54, 3\ns_cbranch_scc0 L_qdone")
    for i in range(4): A(f"ds_read_b64 {vr(XA+2*i,2)}, v28 offset:{L_YR+512*i}")
    A(f"s_lshl_b32 s54, s35, 13\ns_lshl_b32 s55, s34, 9\ns_add_u32 s55, s55, s54\nv_add_u32 v26, s55, v28")
    A("s_lshl_b32 s56, s35, 4\ns_add_u32 s57, s56, s34\nv_mov_b32 v27, s57")
    A("s_waitcnt lgkmcnt(0)")
    A(f"v_pk_add_f32 {vr(XA,2)}, {vr(XA,2)}, {vr(XA+2,2)}\nv_pk_add_f32 {vr(XA+4,2)}, {vr(XA+4,2)}, {vr(XA+6,2)}\nv_pk_add_f32 {vr(XA,2)}, {vr(XA,2)}, {vr(XA+4,2)}")
    A(f"global_store_dwordx2 v26, {vr(XA,2)}, s[30:31] sc1")
    A("v_lshl_add_u32 v26, v1, 4, s54\nv_add_u32 v24, 0x1000, v26")
    A("s_waitcnt vmcnt(0)")
    stamp(3, [1])
    A("s_mov_b64 exec, 1\nglobal_store_byte v27, v25, s[28:29] sc1")
    A("s_mov_b64 exec, 15\nv_lshl_add_u32 v27, v1, 2, s56")
    A(f"s_mov_b32 s58, {spin}\ns_mov_b32 s59, 0x01010101")
    A("L_pq:")
    A("global_load_dword v4, v27, s[28:29] sc1\ns_waitcnt vmcnt(0)\nv_cmp_ne_u32 vcc, s59, v4\ns_cbranch_vccz L_pqd")
    if qsleep: A(f"s_sleep {qsleep}")
    A("s_sub_u32 s58, s58, 1\ns_cbranch_scc0 L_pq")
    A("L_pqd:")
    stamp(4, [1])
    A("s_mov_b64 exec, -1")
    for rq in range(4):
        for hf in range(2):
            A(f"global_load_dwordx4 {vr(WQ+8*rq+4*hf,4)}, v{26 if rq < 2 else 24}, s[30:31] offset:{(rq&1)*2048+hf*1024} sc1")
    A("s_waitcnt vmcnt(0)")
    for i in range(4): A(f"v_pk_add_f32 {vr(WQ+2*i,2)}, {vr(WQ+2*i,2)}, {vr(WQ+8+2*i,2)}\nv_pk_add_f32 {vr(WQ+16+2*i,2)}, {vr(WQ+16+2*i,2)}, {vr(WQ+24+2*i,2)}")
    for i in range(4): A(f"v_pk_add_f32 {vr(WQ+2*i,2)}, {vr(WQ+2*i,2)}, {vr(WQ+16+2*i,2)}")
    for i in range(4): A(f"v_cvt_pk_bf16_f32 v{XA+i}, v{WQ+2*i}, v{WQ+2*i+1}")
    A(f"ds_write_b64 v28, {vr(XA,2)} offset:{L_Q}\nds_write_b64 v28, {vr(XA+2,2)} offset:{L_Q+512}")
    stamp(5, [1])
    A("s_waitcnt lgkmcnt(0)")
    A("L_qdone:")
    A("s_barrier")
    stamp(3, [0])
    permtile(WO, WT)
    A(f"v_lshlrev_b32 v27, 2, v1\ns_mov_b32 s58, {spin}\ns_mov_b32 s59, 0x01010101")
    A("L_pa:")
    A("global_load_dword v4, v27, s[28:29] sc1\ns_waitcnt vmcnt(0)\nv_cmp_ne_u32 vcc, s59, v4\ns_cbranch_vccz L_pad")
    A("s_sleep 8\ns_sub_u32 s58, s58, 1\ns_cbranch_scc0 L_pa")
    A("L_pad:")
    A("s_cmp_lt_u32 s2, 128\ns_cbranch_scc1 L_noffn\ns_cmp_ge_u32 s2, 156\ns_cbranch_scc1 L_tail\ns_bitcmp1_b32 s2, 0\ns_cbranch_scc1 L_tail")
    A("s_sub_u32 s57, s2, 128\ns_lshr_b32 s57, s57, 1")
    A("s_mov_b32 s36, s20\ns_and_b32 s37, s21, 0xffff\ns_mov_b32 s38, 0x1c0000\ns_mov_b32 s40, s22\ns_and_b32 s41, s23, 0xffff\ns_mov_b32 s42, 0x1c0000")
    A("v_and_b32 v4, 1, v1\nv_cmp_eq_u32 vcc, 1, v4\nv_mov_b32 v30, s60\nv_mov_b32 v31, s62\nv_mov_b32 v5, s61\nv_mov_b32 v6, s63")
    A("v_cndmask_b32 v30, v30, v31, vcc\nv_cndmask_b32 v31, v5, v6, vcc")
    A("s_lshl_b32 s54, s4, 8\nv_lshlrev_b32 v5, 10, v4\nv_lshl_add_u32 v5, v2, 4, v5\nv_add_u32 v5, s54, v5")
    A("v_mul_u32_u24 v6, 0x7000, v2\nv_lshl_add_u32 v6, v3, 4, v6")
    A("s_mul_i32 s44, s4, 0x70000\ns_lshl_b32 s54, s57, 8\ns_add_u32 s44, s44, s54")
    for i in range(32): A(f"v_mov_b32 v{D+i}, 0\nv_mov_b32 v{UP+i}, 0")
    A("s_mov_b32 s48, 0")
    A("L_f1:")
    A(f"global_load_dwordx4 {vr(XB,4)}, v5, s[8:9]")
    for s in range(8):
        A(f"buffer_load_dwordx4 {vr(WQ+4*s,4)}, v6, s[36:39], s44 offen nt")
        A(f"buffer_load_dwordx4 {vr(WO+4*s,4)}, v6, s[40:43], s44 offen nt")
        A("s_add_u32 s44, s44, 0xe00")
    A("s_add_u32 s44, s44, 0x15000\nv_add_u32 v5, 64, v5")
    A("s_waitcnt vmcnt(16)")
    normalize(XB, AO)
    A("s_waitcnt vmcnt(0)")
    permtile(WQ, T); mfmatile(D, AO, T, False)
    permtile(WO, T); mfmatile(UP, AO, T, False)
    A("s_add_u32 s48, s48, 1\ns_cmp_lt_u32 s48, 4\ns_cbranch_scc1 L_f1")
    A(f"s_lshl_b32 s54, s4, 11\ns_add_u32 s54, s54, {L_FP}\nv_lshl_add_u32 v7, v3, 5, s54\nv_add_u32 v8, 0x400, v7")
    A("v_mov_b32 v24, 0\nv_mov_b32 v25, 1")
    A("s_mov_b64 exec, 0xffff")
    row0_write(7, D, 0, 0); row0_write(7, D, 1, 512); row0_write(8, UP, 0, 0); row0_write(8, UP, 1, 512)
    A("s_mov_b64 exec, 1\ns_waitcnt lgkmcnt(0)")
    A(f"ds_add_u32 v24, v25 offset:{L_CNT+4}\ns_mov_b32 s58, {spin}")
    A("L_pf:")
    A(f"ds_read_b32 v26, v24 offset:{L_CNT+4}\ns_waitcnt lgkmcnt(0)\nv_cmp_ne_u32 vcc, 4, v26\ns_cbranch_vccz L_pfd")
    A("s_sleep 2\ns_sub_u32 s58, s58, 1\ns_cbranch_scc0 L_pf")
    A("L_pfd:")
    A("s_mov_b64 exec, -1\nv_lshlrev_b32 v7, 4, v1")
    for i in range(4):
        A(f"ds_read_b128 {vr(WQ+4*i,4)}, v7 offset:{L_FP+2048*i}\nds_read_b128 {vr(WO+4*i,4)}, v7 offset:{L_FP+2048*i+1024}")
    A("s_waitcnt lgkmcnt(0)")
    for base in (WQ, WO):
        for i in range(2):
            A(f"v_pk_add_f32 {vr(base+2*i,2)}, {vr(base+2*i,2)}, {vr(base+4+2*i,2)}\nv_pk_add_f32 {vr(base+8+2*i,2)}, {vr(base+8+2*i,2)}, {vr(base+12+2*i,2)}")
        for i in range(2):
            A(f"v_pk_add_f32 {vr(base+2*i,2)}, {vr(base+2*i,2)}, {vr(base+8+2*i,2)}")
        for i in range(2):
            A(f"v_cvt_pk_bf16_f32 v24, v{base+2*i}, v{base+2*i+1}\nv_lshlrev_b32 v{base+2*i}, 16, v24\nv_and_b32 v{base+2*i+1}, s51, v24")
    for i in range(4): A(f"v_max_f32 v{WQ+i}, 0, v{WQ+i}\nv_mul_f32 v{WQ+i}, v{WQ+i}, v{WO+i}")
    A(f"v_cvt_pk_bf16_f32 v24, v{WQ}, v{WQ+1}\nv_cvt_pk_bf16_f32 v25, v{WQ+2}, v{WQ+3}")
    A(f"s_lshl_b32 s54, s4, 10\ns_add_u32 s54, s54, {L_HP}\nv_add_u32 v8, s54, v28\nds_write_b64 v8, v[24:25]")
    A("v_lshlrev_b32 v8, 8, v4\nv_lshl_add_u32 v8, v2, 4, v8\nv_add_u32 v8, s54, v8")
    A("s_mov_b32 s36, s24\ns_and_b32 s37, s25, 0xffff")
    A("v_lshlrev_b32 v6, 4, v3\nv_lshl_add_u32 v6, v2, 13, v6")
    A("s_lshl_b32 s44, s57, 17\ns_lshl_b32 s55, s4, 8\ns_add_u32 s44, s44, s55")
    for i in range(32): A(f"v_mov_b32 v{D+i}, 0")
    A("s_mov_b32 s48, 0")
    A("L_f2:")
    A("s_add_u32 s45, s44, 0x1000")
    for s in range(8):
        A(f"buffer_load_dwordx4 {vr(WQ+4*s,4)}, v6, s[36:39], s{44+(s>>2)} offen offset:{(s&3)*1024} nt")
    A(f"s_waitcnt lgkmcnt(0)\nds_read_b128 {vr(AO,4)}, v8\nv_add_u32 v8, 64, v8\ns_add_u32 s44, s44, 0x8000")
    A("s_waitcnt vmcnt(0) lgkmcnt(0)")
    permtile(WQ, T); mfmatile(D, AO, T, False)
    A("s_add_u32 s48, s48, 1\ns_cmp_lt_u32 s48, 4\ns_cbranch_scc1 L_f2")
    A("v_lshl_add_u32 v8, v3, 5, s54\nv_add_u32 v7, s54, v7")
    A("s_mov_b64 exec, 0xffff")
    row0_write(8, D, 0, 0); row0_write(8, D, 1, 512)
    A("s_mov_b64 exec, -1\ns_waitcnt lgkmcnt(0)")
    A(f"ds_read_b128 {vr(XA,4)}, v7")
    A(f"s_lshl_b32 s54, s57, 11\ns_lshl_b32 s55, s4, 9\ns_add_u32 s54, s54, s55\ns_add_u32 s54, s54, {WS_F}")
    A("v_lshrrev_b32 v5, 5, v1\nv_lshlrev_b32 v5, 15, v5\nv_and_b32 v6, 31, v1\nv_lshl_add_u32 v5, v6, 4, v5\nv_add_u32 v5, s54, v5")
    A("s_waitcnt lgkmcnt(0)")
    A(f"global_store_dwordx4 v5, {vr(XA,4)}, s[30:31] sc1")
    A("s_branch L_tail")
    def reduce_final(r):
        A(f"v_permlane32_swap_b32 v{r}, v{r+1}\nv_permlane32_swap_b32 v{r+2}, v{r+3}\nv_add_f32 v{r}, v{r}, v{r+1}\nv_add_f32 v{r+2}, v{r+2}, v{r+3}")
        A(f"v_permlane16_swap_b32 v{r}, v{r+2}\nv_add_f32 v{r}, v{r}, v{r+2}")
        for n_ in (2, 4, 8): A(f"v_add_f32_dpp v{r}, v{r}, v{r} row_ror:{n_} row_mask:0xf bank_mask:0xf")
    def rbf(r): A(f"v_cvt_pk_bf16_f32 v{r}, v{r}, v{r}\nv_and_b32 v{r}, s51, v{r}")
    G, XV, OA, H2A = 224, 225, 226, 227
    A("L_noffn:")
    A("s_cmp_eq_u32 s4, 1\ns_cbranch_scc0 L_tail")
    A("s_lshr_b32 s56, s2, 6\ns_and_b32 s57, s2, 63")
    A("v_and_b32 v4, 1, v1\nv_lshrrev_b32 v5, 1, v1\nv_lshlrev_b32 v5, 11, v5\nv_lshl_add_u32 v5, v4, 4, v5")
    A(f"s_lshl_b32 s54, s57, 5\ns_lshl_b32 s55, s56, 16\ns_add_u32 s55, s55, s54\ns_add_u32 s55, s55, {WS_H2}\nv_add_u32 v{H2A}, s55, v5")
    A(f"s_lshl_b32 s55, s56, 15\ns_add_u32 s55, s55, s54\ns_add_u32 s55, s55, {WS_F}\nv_add_u32 v5, s55, v5")
    A("v_lshrrev_b32 v6, 1, v2\nv_and_b32 v7, 1, v2\nv_lshl_add_u32 v6, v7, 1, v6\nv_lshl_add_u32 v6, v4, 2, v6")
    A(f"s_lshl_b32 s54, s2, 4\nv_lshl_add_u32 v{OA}, v6, 1, s54")
    A(f"global_load_ushort v{XV}, v{OA}, s[8:9]")
    A(f"v_mov_b32 v8, 0\nv_mov_b32 v9, 0\nv_mov_b32 v10, 0\nv_mov_b32 v11, 0\ns_mov_b32 s58, {spin}")
    A("s_mov_b64 exec, 0xfffffff")
    A("L_pg:")
    A("global_load_dwordx4 v[8:11], v5, s[30:31] sc1\ns_waitcnt vmcnt(0)\nv_max3_u32 v12, v8, v9, v10\nv_max_u32 v12, v12, v11\nv_cmp_eq_u32 vcc, -1, v12\ns_cbranch_vccz L_pgd")
    A("s_sleep 32\ns_sub_u32 s58, s58, 1\ns_cbranch_scc0 L_pg")
    A("L_pgd:")
    A("s_mov_b64 exec, -1")
    reduce_final(8); rbf(8)
    A(f"v_mul_f32 v9, s53, v8\nv_exp_f32 v9, -v9\nv_add_f32 v9, 1.0, v9\nv_rcp_f32 v9, v9\nv_mul_f32 v{G}, v8, v9")
    rbf(G)
    A(f"v_lshlrev_b32 v{XV}, 16, v{XV}")
    A("L_tail:")
    A(f"s_lshl_b32 s54, s4, 9\nv_add_u32 v4, s54, v28\ns_lshl_b32 s55, s4, 5\nv_mov_b32 v5, s55")
    A(f"s_lshl_b32 s56, s35, 15\ns_add_u32 s56, s56, {WS_H1}\ns_lshl_b32 s57, s34, 11\ns_add_u32 s57, s57, s56\nv_add_u32 v6, s57, v4")
    A(f"s_lshl_b32 s57, s35, 9\ns_add_u32 s57, s57, {WS_ML}\ns_lshl_b32 s58, s4, 7\ns_add_u32 s58, s58, s57\ns_lshl_b32 s59, s34, 3\ns_add_u32 s58, s58, s59\nv_mov_b32 v7, s58")
    A("s_lshl_b32 s58, s5, 9\ns_add_u32 s56, s56, s58\ns_lshl_b32 s58, s4, 7\ns_add_u32 s56, s56, s58")
    A("v_lshlrev_b32 v26, 11, v3\nv_lshl_add_u32 v26, v2, 5, v26\nv_add_u32 v26, s56, v26")
    A("s_lshl_b32 s58, s5, 7\ns_add_u32 s57, s57, s58\nv_lshl_add_u32 v27, v3, 3, s57")
    A(f"s_lshl_b32 s56, s35, 2\ns_add_u32 s56, s56, s5\ns_lshl_b32 s56, s56, 11\ns_lshl_b32 s57, s6, 9\ns_add_u32 s56, s56, s57\ns_add_u32 s56, s56, {WS_H2}\nv_add_u32 v25, s56, v28")
    A(f"s_mov_b32 s58, {spin}")
    A("s_waitcnt vmcnt(0)")
    A("s_barrier")
    stamp(4, [0])
    for i in range(4): A(f"ds_read_b64 {vr(32+2*i,2)}, v4 offset:{L_OP+2048*i}")
    A(f"ds_read_b128 v[40:43], v5 offset:{L_ML}\nds_read_b128 v[44:47], v5 offset:{L_ML+16}")
    A("s_waitcnt lgkmcnt(0)")
    A("v_max3_f32 v48, v40, v42, v44\nv_max_f32 v48, v48, v46")
    for i in range(4): A(f"v_sub_f32 v{40+2*i}, v{40+2*i}, v48")
    for i in range(4): A(f"v_exp_f32 v{40+2*i}, v{40+2*i}")
    A("v_pk_mul_f32 v[32:33], v[32:33], v[40:41] op_sel_hi:[1,0]\nv_mul_f32 v49, v40, v41")
    for i in range(1, 4):
        A(f"v_pk_fma_f32 v[32:33], {vr(32+2*i,2)}, {vr(40+2*i,2)}, v[32:33] op_sel_hi:[1,0,1]\nv_fmac_f32 v49, v{40+2*i}, v{41+2*i}")
    A("global_store_dwordx2 v6, v[32:33], s[30:31] sc1")
    A("s_mov_b64 exec, 1\nglobal_store_dwordx2 v7, v[48:49], s[30:31] sc1\ns_mov_b64 exec, -1")
    A("L_p1:")
    A("global_load_dwordx4 v[52:55], v26, s[30:31] sc1\nglobal_load_dwordx4 v[56:59], v26, s[30:31] offset:16 sc1\nglobal_load_dwordx2 v[60:61], v27, s[30:31] sc1")
    A("s_waitcnt vmcnt(0)")
    A("v_max3_u32 v12, v52, v53, v54\nv_max3_u32 v13, v55, v56, v57\nv_max3_u32 v12, v12, v58, v59\nv_max3_u32 v13, v13, v60, v61\nv_max_u32 v12, v12, v13")
    A("v_cmp_eq_u32 vcc, -1, v12\ns_cbranch_vccz L_p1d")
    A("s_sub_u32 s58, s58, 1\ns_cbranch_scc0 L_p1")
    A("L_p1d:")
    stamp(5, [0])
    A("v_mov_b32 v62, v60")
    for n_ in (8, 4, 2, 1): A(f"v_max_f32_dpp v62, v62, v62 row_ror:{n_} row_mask:0xf bank_mask:0xf")
    A("v_sub_f32 v60, v60, v62\nv_exp_f32 v60, v60\nv_mul_f32 v61, v60, v61")
    for i in range(4): A(f"v_pk_mul_f32 {vr(52+2*i,2)}, {vr(52+2*i,2)}, v[60:61] op_sel_hi:[1,0]")
    for n_ in (8, 4, 2, 1):
        A(f"v_add_f32_dpp v61, v61, v61 row_ror:{n_} row_mask:0xf bank_mask:0xf")
        for i in range(8): A(f"v_add_f32_dpp v{52+i}, v{52+i}, v{52+i} row_ror:{n_} row_mask:0xf bank_mask:0xf")
    A("v_rcp_f32 v60, v61")
    for i in range(4): A(f"v_pk_mul_f32 {vr(52+2*i,2)}, {vr(52+2*i,2)}, v[60:61] op_sel_hi:[1,0]")
    for i in range(4): A(f"v_cvt_pk_bf16_f32 v{AO+i}, v{52+2*i}, v{53+2*i}")
    mfmatile(D, AO, WT, True)
    A("s_mov_b64 exec, 0xffff")
    row0_write(29, D, 0, 0)
    A("s_mov_b64 exec, -1\ns_waitcnt lgkmcnt(0)")
    A("s_barrier")
    A("s_cmp_eq_u32 s4, 0\ns_cbranch_scc0 L_fin")
    for i in range(4): A(f"ds_read_b64 {vr(XA+2*i,2)}, v28 offset:{L_YR+512*i}")
    A("s_waitcnt lgkmcnt(0)")
    A(f"v_pk_add_f32 {vr(XA,2)}, {vr(XA,2)}, {vr(XA+2,2)}\nv_pk_add_f32 {vr(XA+4,2)}, {vr(XA+4,2)}, {vr(XA+6,2)}\nv_pk_add_f32 {vr(XA,2)}, {vr(XA,2)}, {vr(XA+4,2)}")
    A(f"global_store_dwordx2 v25, {vr(XA,2)}, s[30:31] sc1")
    A("s_branch L_end")
    A("L_fin:")
    A("s_cmp_eq_u32 s4, 1\ns_cbranch_scc0 L_end\ns_cmp_lt_u32 s2, 128\ns_cbranch_scc0 L_end")
    A(f"s_mov_b32 s58, {spin}")
    A("L_p2:")
    A(f"global_load_dwordx4 v[8:11], v{H2A}, s[30:31] sc1\ns_waitcnt vmcnt(0)\nv_max3_u32 v12, v8, v9, v10\nv_max_u32 v12, v12, v11\nv_cmp_eq_u32 vcc, -1, v12\ns_cbranch_vccz L_p2d")
    A("s_sub_u32 s58, s58, 1\ns_cbranch_scc0 L_p2")
    A("L_p2d:")
    reduce_final(8); rbf(8)
    A(f"v_mul_f32 v8, v8, v{G}"); rbf(8)
    A(f"v_add_f32 v8, v8, v{XV}\nv_cvt_pk_bf16_f32 v8, v8, v8")
    A("s_mov_b32 exec_lo, 0x00030003\ns_mov_b32 exec_hi, 0x00030003")
    A(f"global_store_short v{OA}, v8, s[26:27]")
    A("L_end:")
    if stamps:
        A("s_waitcnt vmcnt(0)")
        stamp(6)
        A("L_stamps:")
        A("s_getreg_b32 s78, hwreg(HW_REG_XCC_ID)\ns_mov_b32 s79, 0")
        A("s_waitcnt lgkmcnt(0)\ns_mov_b64 exec, 1\ns_lshl_b32 s54, s2, 3\ns_add_u32 s54, s54, s3\ns_lshl_b32 s54, s54, 6\ns_add_u32 s54, s54, 0x10000000\nv_mov_b32 v4, s54")
        for i in range(4):
            for k in range(4): A(f"v_mov_b32 v{8+k}, s{64+4*i+k}")
            A(f"global_store_dwordx4 v4, v[8:11], s[30:31] offset:{16*i}")
    A("L_exit:")
    A("s_endpgm")
    A.check_all_edges()
    out = HEADER
    out += f"; @launch grid=(256,1,1) block=(512,1,1) lds={L_SIZE}\n"
    out += f'.amdgcn_target "amdgcn-amd-amdhsa--gfx950"\n.text\n.globl {NAME}_kernel\n.p2align 8\n.type {NAME}_kernel,@function\n'
    out += A.text()
    out += f""".section .rodata,"a"
.p2align 6
.amdhsa_kernel {NAME}_kernel
  .amdhsa_next_free_vgpr 240
  .amdhsa_next_free_sgpr 96
  .amdhsa_accum_offset 240
  .amdhsa_group_segment_fixed_size 0
  .amdhsa_kernarg_size 96
  .amdhsa_user_sgpr_count 2
  .amdhsa_user_sgpr_kernarg_segment_ptr 1
  .amdhsa_system_sgpr_workgroup_id_x 1
  .amdhsa_float_denorm_mode_32 3
.end_amdhsa_kernel
"""
    return out

if __name__ == "__main__":
    ap = argparse.ArgumentParser()
    ap.add_argument("out"); ap.add_argument("--stamps", action="store_true"); ap.add_argument("--nomimic", action="store_true")
    ap.add_argument("--thr", type=int, default=4); ap.add_argument("--sset", type=int, default=0); ap.add_argument("--qsleep", type=int, default=0)
    a = ap.parse_args()
    open(a.out, "w").write(gen(stamps=a.stamps, mimic=not a.nomimic, thr=a.thr, sset=a.sset, qsleep=a.qsleep))
```

```python
import sys, argparse
from asmlib import Asm
NAME = "recurrent_scan__gqa_block_cached__glu_gated_reglu__decode"

HEADER = open("cdna_kernels/" + NAME + ".s.ref").read().split("; Override launch")[0]

WS_QP = 0x0
WS_G1 = 0x90000
WS_F = 0x20000
WS_H2 = 0x40000
WS_E = 0x80000
WS_H1 = 0x100000
L_PRG = 0; L_CNT = 1408; L_MODE = 1416; L_Q = 256; L_ML = 1280; L_TP = 1536; L_YR = 2048; L_OP = 4096; L_FP = 12288; L_SC = 16384; L_SIZE = 32768

def gen(stamps=False, mimic=True, thr=4, spin=1 << 16, sset=0, qsleep=0, psleep=0, noffn=False, R=16, rot=2, trk=2, q0sleep=0, exp='', RV=4, lim=2, ctl=False, ctl_thr=(3, 2), ctl_d=(8, 24), ctl_int=32, ctl_t0=80):
    A = Asm()
    nst = [0]
    def stamp(i, sets=None):
        if stamps and (sets is None or sset in sets): A(f"s_memrealtime s[{64+2*i}:{65+2*i}]")
    def vr(a, n): return f"v[{a}:{a+n-1}]"
    lab = [0]
    def newlab(p):
        lab[0] += 1; return f"L_{p}{lab[0]}"

    A(f"{NAME}_kernel:")
    stamp(0)
    A("s_cmp_ge_u32 s2, 256\ns_cbranch_scc1 L_exit")
    A("s_load_dwordx16 s[8:23], s[0:1], 0\ns_load_dwordx8 s[24:31], s[0:1], 64")
    A("v_lshrrev_b32 v4, 6, v0\nv_and_b32 v1, 63, v0\nv_mov_b32 v6, 0\nv_readfirstlane_b32 s3, v4\nv_mov_b32 v7, 0")
    A(f"ds_write_b64 v6, v[6:7] offset:{L_CNT}\nds_write_b64 v6, v[6:7] offset:{L_MODE}")
    A("ds_write_b64 v6, v[6:7]")
    A("s_and_b32 s32, s2, 7\ns_bfe_u32 s33, s2, 0x10003\ns_lshr_b32 s34, s2, 4\ns_lshl_b32 s35, s33, 3\ns_add_u32 s35, s35, s32")
    A("v_lshrrev_b32 v2, 4, v1\nv_and_b32 v3, 15, v1")
    A("s_mov_b32 s49, 0x05040100\ns_mov_b32 s50, 0x07060302\ns_mov_b32 s51, 0xffff0000\ns_mov_b32 s53, 0x3fb8aa3b")
    A("s_mov_b32 s39, 0x20000\ns_mov_b32 s43, 0x20000")
    A("s_cmp_ge_u32 s3, 4\ns_cbranch_scc1 L_aux")

    Q, P, M, Lr, S, TD, D, O, T, RING = 4, 8, 12, 13, 20, 28, 32, 48, 80, 112
    def RB(slot, u): return RING + 8 * slot + 4 * u
    A("s_lshl_b32 s54, s35, 4\ns_add_u32 s54, s54, s34")
    A(f"s_mul_i32 s44, s54, {rot * 8192}\ns_and_b32 s44, s44, 0x7ffff\ns_lshl_b32 s54, s54, 19")
    A("s_lshl_b32 s55, s3, 11")
    A("v_lshrrev_b32 v14, 2, v3\nv_lshlrev_b32 v14, 8, v14\nv_and_b32 v15, 3, v1\nv_lshlrev_b32 v15, 4, v15")
    A("v_lshl_add_u32 v14, v2, 6, v14\nv_add3_u32 v14, v14, v15, s55")
    A("s_mov_b32 s38, 0x80000")
    A("s_waitcnt lgkmcnt(0)")
    A("s_add_u32 s36, s10, s54\ns_addc_u32 s37, s11, 0\ns_and_b32 s37, s37, 0xffff")
    def issue(slot):
        for u in range(2):
            A(f"buffer_load_dwordx4 {vr(RB(slot,u),4)}, v14, s[36:39], s44 offen offset:{u*1024} nt")
        A("s_add_u32 s44, s44, 0x2000\ns_and_b32 s44, s44, 0x7ffff")
        if prog: A(f"ds_add_u32 v0, v15 offset:{L_PRG}")
    def throttle():
        if not ctl:
            A(f"s_waitcnt vmcnt({thr})"); return
        l_ = newlab("th"); c_ = A.counted
        A(f"s_waitcnt vmcnt({thr})\ns_cmp_eq_u32 s45, 0\ns_cbranch_scc1 {l_}")
        A.counted = False
        if len(ctl_thr) > 1: A(f"s_waitcnt vmcnt({ctl_thr[0]})\ns_cmp_eq_u32 s45, 1\ns_cbranch_scc1 {l_}")
        A(f"s_waitcnt vmcnt({ctl_thr[-1]})")
        A(f"{l_}:"); A.counted = c_
    prog = False
    for n in range(R):
        if 2 * n > thr: A(f"s_waitcnt vmcnt({thr})")
        issue(n)
        if n == 2:
            A("s_barrier")
            A("s_add_u32 s40, s12, s54\ns_addc_u32 s41, s13, 0\ns_and_b32 s41, s41, 0xffff")
            for i in range(32): A(f"v_mov_b32 v{O+i}, 0")
            A(f"v_mov_b32 v{M}, 0xff7fffff\nv_mov_b32 v{Lr}, 0")
            A("v_and_b32 v16, 3, v1\nv_lshlrev_b32 v16, 8, v16\nv_lshrrev_b32 v17, 2, v1\nv_lshl_add_u32 v16, v17, 4, v16")
            A(f"s_lshl_b32 s56, s3, 12\ns_add_u32 s56, s56, {L_SC}\nv_lshl_add_u32 v19, v2, 6, v15\nv_add_u32 v19, s56, v19")
            A("s_mov_b32 s52, 0x3db504f3\ns_mov_b32 s48, 0\ns_mov_b32 s46, 0x000f000f\ns_mov_b32 s47, 0x000f000f")
    stamp(1)
    A("s_barrier")
    A(f"ds_read_b128 {vr(Q,4)}, v16 offset:{L_Q}")
    A("s_waitcnt lgkmcnt(0)")
    stamp(2)
    NIT = 64 // R
    def dpp(k):
        d0 = D + 8 * (k & 1); d1 = d0 + 4
        A(f"v_add_f32_dpp v{TD}, v{d0+3}, v{d0+2} row_shl:4 row_mask:0xf bank_mask:0xf bound_ctrl:0")
        A(f"v_add_f32_dpp v{TD+1}, v{d1+3}, v{d1+2} row_shl:4 row_mask:0xf bank_mask:0xf bound_ctrl:0")
        A(f"v_add_f32_dpp v{TD+2}, v{d0+1}, v{d0} row_shl:4 row_mask:0xf bank_mask:0xf bound_ctrl:0")
        A(f"v_add_f32_dpp v{TD+3}, v{d1+1}, v{d1} row_shl:4 row_mask:0xf bank_mask:0xf bound_ctrl:0")
    def fin(k):
        A(f"v_add_f32_dpp v{S}, v{TD}, v{TD+2} row_shl:8 row_mask:0xf bank_mask:0xf bound_ctrl:0")
        A(f"v_add_f32_dpp v{S+1}, v{TD+1}, v{TD+3} row_shl:8 row_mask:0xf bank_mask:0xf bound_ctrl:0")
        A(f"v_cvt_pk_bf16_f32 v16, v{S}, v{S+1}\nv_lshlrev_b32 v{S}, 16, v16\nv_and_b32 v{S+1}, s51, v16")
        A(f"v_mul_f32 v{S}, s52, v{S}\nv_mul_f32 v{S+1}, s52, v{S+1}")
        A(f"v_cvt_pk_bf16_f32 v{P+(k&3)}, v{S}, v{S+1}\nv_max3_f32 v{M}, v{M}, v{S}, v{S+1}")
        if k & 3 == 3:
            A(f"s_mov_b64 exec, s[46:47]\nds_write_b128 v19, {vr(P,4)} offset:{256*(k>>2)}\ns_mov_b64 exec, -1")
    ST = R // RV
    A("s_mov_b64 vcc, 0\nv_mov_b32 v17, 0\nv_mov_b32 v15, 1\ns_mov_b32 s45, 0\nv_lshlrev_b32 v0, 2, v1")
    prog = True
    A("L_kloop:")
    for k in range(R):
        d0 = D + 8 * (k & 1)
        if k > 0: dpp(k - 1)
        A(f"v_mfma_f32_16x16x32_bf16 {vr(d0,4)}, {vr(RB(k,0),4)}, {vr(Q,4)}, 0")
        A(f"v_mfma_f32_16x16x32_bf16 {vr(d0+4,4)}, {vr(RB(k,1),4)}, {vr(Q,4)}, 0")
        if k % ST != ST - 1:
            l1 = newlab("ks"); A(f"s_cbranch_vccnz {l1}"); A.counted = False
        throttle()
        issue(k)
        if k % ST != ST - 1:
            A(f"{l1}:"); A.counted = True
        if ctl and k & 3 == 1: A(f"ds_read_b32 v18, v17 offset:{L_MODE}")
        if ctl and k & 3 == 2: A("s_waitcnt lgkmcnt(0)\nv_readfirstlane_b32 s45, v18")
        if k > 0: fin(k - 1)
    dpp(R - 1); fin(R - 1)
    A(f"s_add_u32 s48, s48, 1\nv_add_u32 v19, {64*R}, v19")
    A(f"s_cmp_lt_u32 s48, {NIT-1}\ns_cbranch_scc1 L_kloop")
    A(f"s_cmp_eq_u32 s48, {NIT-1}\ns_cbranch_scc0 L_kdone")
    A("s_mov_b32 s36, s40\ns_mov_b32 s37, s41\nv_lshl_add_u32 v14, v1, 4, s55\ns_mov_b64 vcc, -1\ns_branch L_kloop")
    A("L_kdone:")
    A(f"v_cvt_pk_bf16_f32 v{M}, v{M}, v{M}\nv_and_b32 v{M}, s51, v{M}\nv_add_u32 v19, -4096, v19")
    A(f"v_mov_b32 v18, v{M}\nv_permlane32_swap_b32 v{M}, v18\nv_max_f32 v{M}, v{M}, v18\nv_mov_b32 v18, v{M}\nv_permlane16_swap_b32 v{M}, v18\nv_max_f32 v{M}, v{M}, v18")
    for n_ in (4, 8, 12): A(f"v_mov_b32_dpp v{M}, v{M} row_shr:{n_} row_mask:0xf bank_mask:{hex(1 << (n_ // 4))}")
    A(f"v_mul_f32 v{M}, s53, v{M}")
    A("s_mov_b32 s48, 0\ns_mov_b64 vcc, 0\ns_waitcnt lgkmcnt(0)")
    stamp(5, [3])
    assert thr <= 2 * (RV - 2)
    def VP(k): return ST * k + ST - 1
    def perms(k):
        t = k & 3
        for d in range(4):
            A(f"v_perm_b32 v{T+4*(2*d)+t}, v{RB(VP(k),1)+d}, v{RB(VP(k),0)+d}, s49")
            A(f"v_perm_b32 v{T+4*(2*d+1)+t}, v{RB(VP(k),1)+d}, v{RB(VP(k),0)+d}, s50")
    nfl = (thr + 3) // 2
    def tail(k):
        rem = RV - 1 - (k + 1)
        lastwait = 2 * rem if (0 <= rem < nfl) else None
        l1 = newlab("sk")
        A(f"s_cbranch_vccnz {l1}")
        A.counted = False
        throttle()
        issue(VP(k))
        if lastwait is not None:
            l2 = newlab("jn")
            A(f"s_branch {l2}\n{l1}:\ns_waitcnt vmcnt({lastwait})\n{l2}:")
        else:
            A(f"{l1}:")
        A.counted = True
    A("L_vloop:")
    for k in range(RV):
        t = k & 3
        if t == 0:
            A(f"ds_read_b128 {vr(TD,4)}, v19 offset:{256*(k>>2)}")
            if ctl: A(f"ds_read_b32 v18, v17 offset:{L_MODE}")
            perms(k)
        elif t == 1:
            perms(k)
            A("s_waitcnt lgkmcnt(0)")
            if ctl: A("v_readfirstlane_b32 s45, v18")
            for i in range(4): A(f"v_lshlrev_b32 v{S+2*i}, 16, v{TD+i}\nv_and_b32 v{S+2*i+1}, s51, v{TD+i}")
            for i in range(8): A(f"v_fma_f32 v{S+i}, v{S+i}, s53, -v{M}")
            for i in range(8): A(f"v_exp_f32 v{S+i}, v{S+i}")
        elif t == 2:
            perms(k)
            for i in range(4): A(f"v_cvt_pk_bf16_f32 v{P+i}, v{S+2*i}, v{S+2*i+1}")
            A(f"v_pk_add_f32 {vr(S,2)}, {vr(S,2)}, {vr(S+2,2)}\nv_pk_add_f32 {vr(S+4,2)}, {vr(S+4,2)}, {vr(S+6,2)}")
            A(f"v_pk_add_f32 {vr(S,2)}, {vr(S,2)}, {vr(S+4,2)}\nv_add_f32 v{Lr}, v{Lr}, v{S}\nv_add_f32 v{Lr}, v{Lr}, v{S+1}")
        else:
            perms(k)
            for e in range(8):
                A(f"v_mfma_f32_16x16x32_bf16 {vr(O+4*e,4)}, {vr(T+4*e,4)}, {vr(P,4)}, {vr(O+4*e,4)}")
        tail(k)
    A(f"v_add_u32 v19, {64*RV}, v19")
    A(f"s_add_u32 s48, s48, 1\ns_cmp_eq_u32 s48, {64//RV-1}\ns_cselect_b64 vcc, -1, 0\ns_cmp_lt_u32 s48, {64//RV}\ns_cbranch_scc1 L_vloop")
    stamp(3)
    A(f"v_mov_b32 v18, v{Lr}\nv_lshlrev_b32 v16, 9, v3\nv_lshl_add_u32 v16, v2, 7, v16\nv_permlane32_swap_b32 v{Lr}, v18\nv_add_f32 v{Lr}, v{Lr}, v18")
    A(f"v_mov_b32 v18, v{Lr}\nv_add_u32 v16, s55, v16\ns_lshl_b32 s56, s3, 3\nv_lshlrev_b32 v17, 5, v3\nv_permlane16_swap_b32 v{Lr}, v18\nv_add_f32 v{Lr}, v{Lr}, v18")
    A("v_add_u32 v17, s56, v17")
    A("s_mov_b32 exec_lo, 0x000f000f\ns_mov_b32 exec_hi, 0x000f000f")
    for e in range(8): A(f"ds_write_b128 v16, {vr(O+4*e,4)} offset:{L_OP+16*e}")
    A(f"ds_write_b64 v17, {vr(M,2)} offset:{L_ML}")
    A("s_waitcnt lgkmcnt(0)")
    A("s_barrier")
    if stamps:
        stamp(4); stamp(5, [0, 1, 2]); stamp(6); A("s_branch L_stamps")
    else:
        A("s_endpgm")

    XA, XB, AO, WQ, WO, T, D, WT, UP, U = 8, 16, 20, 32, 64, 96, 128, 160, 192, 224
    TAG = "s46"
    A("L_aux:")
    A("s_sub_u32 s4, s3, 4")
    A("s_lshr_b32 s5, s34, 2\ns_and_b32 s6, s34, 3")
    A("s_lshl_b32 s7, s5, 2\ns_add_u32 s7, s7, s4")
    A("v_lshlrev_b32 v4, 5, v1")
    A("v_lshrrev_b32 v24, 3, v3\nv_lshl_add_u32 v24, v24, 2, v2\nv_and_b32 v25, 7, v1")
    A("s_and_b32 s56, s34, 1\ns_lshl_b32 s57, s56, 2\ns_add_u32 s57, s57, s4")
    A("s_lshl_b32 s54, s33, 10\ns_lshl_b32 s55, s57, 7\ns_add_u32 s54, s54, s55\nv_lshl_add_u32 v5, v24, 4, s54")
    A("v_lshlrev_b32 v25, 4, v25\nv_lshl_add_u32 v6, v24, 16, v25\nv_lshlrev_b32 v7, 4, v3\nv_lshl_add_u32 v7, v2, 11, v7")
    A("s_lshl_b32 s44, s57, 19\ns_lshl_b32 s55, s32, 10\ns_add_u32 s44, s44, s55\ns_lshr_b32 s57, s34, 1\ns_lshl_b32 s55, s57, 7\ns_add_u32 s44, s44, s55")
    A("s_lshl_b32 s55, s6, 8\ns_lshl_b32 s45, s32, 4\ns_add_u32 s45, s45, s7\ns_lshl_b32 s45, s45, 15\ns_add_u32 s45, s45, s55")
    A("s_mov_b32 s38, 0x400000\ns_mov_b32 s42, 0x400000")
    A("s_waitcnt lgkmcnt(0)")
    A(f"global_load_dwordx4 {vr(XA,4)}, v4, s[8:9]\nglobal_load_dwordx4 {vr(XA+4,4)}, v4, s[8:9] offset:16\nglobal_load_dwordx4 {vr(XB,4)}, v5, s[8:9]")
    A("s_mov_b32 s36, s14\ns_and_b32 s37, s15, 0xffff\ns_mov_b32 s40, s16\ns_and_b32 s41, s17, 0xffff")
    for s in range(8):
        if 'W' not in exp: A(f"buffer_load_dwordx4 {vr(WQ+4*s,4)}, v6, s[36:39], s44 offen nt")
        if s < 7: A("s_add_u32 s44, s44, 0x2000")
    A(f"s_load_dword s47, s[30:31], {WS_E}")
    A("s_barrier")
    A(f"s_lshl_b32 s54, s4, 9\ns_add_u32 s54, s54, {L_YR}\nv_lshl_add_u32 v29, v3, 5, s54")
    A("v_lshlrev_b32 v28, 3, v1")
    A("s_lshr_b32 s95, s2, 1\ns_mov_b32 s90, 0x1c0000\ns_mov_b32 s91, 0x20000")
    A("s_bitcmp0_b32 s95, 2\ns_cselect_b32 s88, s20, s22\ns_cselect_b32 s89, s21, s23")
    A("s_and_b32 s55, s95, 3\ns_lshl_b32 s54, s55, 2\ns_add_u32 s54, s54, s4")
    A(f"v_and_b32 v{WT+1}, 1, v1\nv_lshlrev_b32 v{WT+1}, 10, v{WT+1}\nv_lshl_add_u32 v{WT+1}, v2, 4, v{WT+1}\ns_lshl_b32 s92, s54, 6\nv_add_u32 v{WT+1}, s92, v{WT+1}")
    A("s_mul_i32 s92, s54, 0x1c000\ns_lshr_b32 s54, s95, 3\ns_lshl_b32 s54, s54, 8\ns_add_u32 s92, s92, s54\ns_movk_i32 s93, 0xe00")
    A(f"s_mov_b32 s59, {WS_G1}\ns_cmp_lt_u32 s95, 112\ns_cselect_b32 s94, 1, 0")
    A("s_bitcmp1_b32 s2, 0\ns_cbranch_scc0 L_role")
    A("s_mov_b32 s88, s24\ns_mov_b32 s89, s25\ns_and_b32 s54, s95, 0xfc\ns_add_u32 s54, s54, s4\ns_lshl_b32 s92, s54, 15\ns_lshl_b32 s55, s55, 8\ns_add_u32 s92, s92, s55\ns_movk_i32 s93, 0x400")
    A(f"s_mov_b32 s59, {WS_F}\ns_cmp_lt_u32 s95, 56\ns_cselect_b32 s94, 2, 0")
    A("L_role:")
    if noffn: A("s_mov_b32 s94, 0")
    A(f"s_and_b32 s89, s89, 0xffff\ns_lshl_b32 s54, s95, 11\ns_add_u32 s59, s59, s54\ns_lshl_b32 s54, s93, 3\nv_mul_u32_u24 v{WT}, s54, v2\nv_lshl_add_u32 v{WT}, v3, 4, v{WT}")
    A("s_waitcnt vmcnt(9)")
    stamp(1, [0])
    for d in range(8):
        A(f"v_lshlrev_b32 v{U+2*d}, 16, v{XA+d}\nv_and_b32 v{U+2*d+1}, s51, v{XA+d}")
    def allred32(r, t):
        for n_ in (8, 4, 2, 1): A(f"v_add_f32_dpp v{r}, v{r}, v{r} row_ror:{n_} row_mask:0xf bank_mask:0xf")
        A(f"v_mov_b32 v{t}, v{r}\nv_permlane16_swap_b32 v{r}, v{t}\nv_add_f32 v{r}, v{r}, v{t}")
    for d in range(4): A(f"v_pk_add_f32 {vr(XA+2*d,2)}, {vr(U+4*d,2)}, {vr(U+4*d+2,2)}")
    A(f"v_pk_add_f32 {vr(XA,2)}, {vr(XA,2)}, {vr(XA+2,2)}\nv_pk_add_f32 {vr(XA+4,2)}, {vr(XA+4,2)}, {vr(XA+6,2)}")
    A(f"v_pk_add_f32 {vr(XA,2)}, {vr(XA,2)}, {vr(XA+4,2)}\nv_add_f32 v24, v{XA}, v{XA+1}")
    allred32(24, 25)
    A("v_mul_f32 v24, 0x3b000000, v24")
    for d in range(16): A(f"v_sub_f32 v{U+d}, v{U+d}, v24")
    A(f"v_mul_f32 v26, v{U}, v{U}\nv_mul_f32 v27, v{U+1}, v{U+1}")
    for d in range(2, 16): A(f"v_fmac_f32 v{26+(d&1)}, v{U+d}, v{U+d}")
    A("v_add_f32 v26, v26, v27")
    allred32(26, 25)
    A("v_mul_f32 v26, 0x3b000000, v26")
    A("v_cvt_pk_bf16_f32 v24, v24, v26\nv_and_b32 v26, s51, v24\nv_lshlrev_b32 v24, 16, v24")
    A("v_add_f32 v26, 0x3727c5ac, v26\nv_cvt_pk_bf16_f32 v26, v26, v26\nv_and_b32 v26, s51, v26")
    A("v_sqrt_f32 v26, v26\nv_cvt_pk_bf16_f32 v26, v26, v26\nv_and_b32 v26, s51, v26\nv_rcp_f32 v26, v26")
    A("v_readlane_b32 s60, v24, 0\nv_readlane_b32 s62, v24, 32\nv_readlane_b32 s61, v26, 0\nv_readlane_b32 s63, v26, 32")
    A("s_cmp_eq_u32 s33, 0\ns_cselect_b32 s54, s60, s62\ns_cselect_b32 s55, s61, s63")
    A("v_mov_b32 v30, s54\nv_mov_b32 v31, s55")
    def normalize(src, dst):
        for d in range(4): A(f"v_lshlrev_b32 v{U+2*d}, 16, v{src+d}\nv_and_b32 v{U+2*d+1}, s51, v{src+d}")
        for d in range(8): A(f"v_sub_f32 v{U+d}, v{U+d}, v30")
        for d in range(4): A(f"v_cvt_pk_bf16_f32 v{dst+d}, v{U+2*d}, v{U+2*d+1}")
        for d in range(4): A(f"v_lshlrev_b32 v{U+2*d}, 16, v{dst+d}\nv_and_b32 v{U+2*d+1}, s51, v{dst+d}")
        for d in range(8): A(f"v_mul_f32 v{U+d}, v{U+d}, v31")
        for d in range(4): A(f"v_cvt_pk_bf16_f32 v{dst+d}, v{U+2*d}, v{U+2*d+1}")
    def permtile(src, dst):
        for d in range(4):
            for t in range(4):
                A(f"v_perm_b32 v{dst+4*(2*d)+t}, v{src+4*(2*t+1)+d}, v{src+4*(2*t)+d}, s49")
            for t in range(4):
                A(f"v_perm_b32 v{dst+4*(2*d+1)+t}, v{src+4*(2*t+1)+d}, v{src+4*(2*t)+d}, s50")
    def mfmatile(acc, a, w, zero):
        for e in range(8):
            A(f"v_mfma_f32_16x16x32_bf16 {vr(acc+4*e,4)}, {vr(a,4)}, {vr(w+4*e,4)}, {'0' if zero else vr(acc+4*e,4)}")
    def row0_write(addr, acc, r, off):
        for e in range(0, 8, 2):
            A(f"ds_write2_b32 v{addr}, v{acc+4*e+r}, v{acc+4*(e+1)+r} offset0:{off//4+e} offset1:{off//4+e+1}")
    def poll(name, loads, sleep=0, masks=None):
        A(f"s_mov_b32 s58, {spin}")
        for i in range(len(loads)):
            m = masks[i] if masks else -1
            if m == -1: A(f"s_mov_b64 s[{80+2*i}:{81+2*i}], -1")
            else: A(f"s_mov_b32 s{80+2*i}, {hex(m & 0xffffffff)}\ns_mov_b32 s{81+2*i}, {hex(m >> 32)}")
        A(f"L_{name}:")
        for i, (l_, r) in enumerate(loads):
            A(f"s_mov_b64 exec, s[{80+2*i}:{81+2*i}]")
            if len(loads) > 1:
                A(f"s_cbranch_execz L_{name}s{i}"); A.counted = False; A(l_); A.counted = True; A(f"L_{name}s{i}:")
            else: A(l_)
        A("s_waitcnt vmcnt(0)")
        for i, (l_, r) in enumerate(loads):
            if len(loads) > 1: A(f"s_mov_b64 exec, s[{80+2*i}:{81+2*i}]")
            A(f"v_cmp_ne_u32 s[{80+2*i}:{81+2*i}], {TAG}, v{r}")
        A("s_mov_b64 exec, -1")
        if len(loads) == 1: A("s_or_b64 vcc, s[80:81], s[80:81]")
        else:
            A("s_or_b64 vcc, s[80:81], s[82:83]")
            for i in range(2, len(loads)): A(f"s_or_b64 vcc, vcc, s[{80+2*i}:{81+2*i}]")
        A(f"s_cbranch_scc0 L_{name}d")
        if sleep: A(f"s_sleep {sleep}")
        A(f"s_sub_u32 s58, s58, 1\ns_cbranch_scc0 L_{name}")
        A(f"L_{name}d:")
    def trickle(loads):
        n_ = 0
        for l_ in loads:
            if l_.startswith(("buffer_load", "global_load")):
                if n_ and n_ % trk == 0: A("s_waitcnt vmcnt(0)")
                n_ += 1
            A(l_)
    A("s_waitcnt vmcnt(8)")
    normalize(XB, AO)
    A("s_waitcnt vmcnt(0)")
    stamp(2, [0]); stamp(1, [1])
    permtile(WQ, T)
    mfmatile(D, AO, T, True)
    def xrow(regs, t):
        for i, r in enumerate(regs): A(f"v_mov_b32 v{t+i}, v{r}")
        for i, r in enumerate(regs): A(f"v_permlane32_swap_b32 v{r}, v{t+i}")
        for i, r in enumerate(regs): A(f"v_add_f32 v{r}, v{r}, v{t+i}")
        for i, r in enumerate(regs): A(f"v_mov_b32 v{t+i}, v{r}")
        for i, r in enumerate(regs): A(f"v_permlane16_swap_b32 v{r}, v{t+i}")
        for i, r in enumerate(regs): A(f"v_add_f32 v{r}, v{r}, v{t+i}")
    A("v_mov_b32 v24, 0\nv_mov_b32 v25, 1")
    A("s_lshl_b32 s54, s35, 13\ns_lshl_b32 s55, s56, 12\ns_add_u32 s55, s55, s54\ns_lshl_b32 s57, s57, 9\ns_add_u32 s55, s55, s57\nv_lshl_add_u32 v26, v1, 4, s55")
    A("s_lshl_b32 s55, s4, 10\ns_add_u32 s55, s55, s54\ns_add_u32 s55, s55, 0x1000\nv_lshl_add_u32 v4, v1, 4, s55")
    A("s_mov_b32 exec_lo, 0xff\ns_mov_b32 exec_hi, 0xff00")
    row0_write(29, D, 0, 0)
    A("s_mov_b64 exec, 1")
    A("s_waitcnt lgkmcnt(0)")
    A(f"ds_add_rtn_u32 v27, v24, v25 offset:{L_CNT}")
    A(f"s_add_u32 {TAG}, s47, 0x9e3779b9")
    A("s_waitcnt lgkmcnt(0)")
    stamp(2, [1]); stamp(3, [1])
    A("v_readfirstlane_b32 s54, v27\ns_mov_b64 exec, -1\ns_cmp_eq_u32 s54, 3\ns_cbranch_scc0 L_qwait")
    for i in range(4): A(f"ds_read_b64 {vr(XA+2*i,2)}, v28 offset:{L_YR+512*i}")
    A("s_waitcnt lgkmcnt(0)")
    A(f"v_pk_add_f32 {vr(XA,2)}, {vr(XA,2)}, {vr(XA+2,2)}\nv_pk_add_f32 {vr(XA+4,2)}, {vr(XA+4,2)}, {vr(XA+6,2)}\nv_pk_add_f32 {vr(XA,2)}, {vr(XA,2)}, {vr(XA+4,2)}")
    A(f"v_mov_b32 v{XA+4}, v{XA}\nv_mov_b32 v{XA+5}, v{XA+1}\nv_mov_b32 v{XA+2}, {TAG}\nv_permlane32_swap_b32 v{XA}, v{XA+4}\nv_permlane32_swap_b32 v{XA+1}, v{XA+5}")
    A(f"v_pk_add_f32 {vr(XA,2)}, {vr(XA,2)}, {vr(XA+4,2)}")
    A(f"s_mov_b32 exec_hi, 0\nglobal_store_dwordx4 v26, {vr(XA,4)}, s[30:31] sc1\ns_mov_b32 exec_hi, -1")
    A(f"s_mov_b64 exec, 1\nds_add_u32 v24, v25 offset:{L_CNT}\ns_mov_b64 exec, -1")
    stamp(3, [1])
    A("s_branch L_qpub")
    def ldswait(name, off, val, sleep):
        A(f"s_mov_b32 s58, {spin}\nv_mov_b32 v24, 0")
        A(f"L_{name}:")
        A(f"ds_read_b32 v27, v24 offset:{off}\ns_waitcnt lgkmcnt(0)\nv_cmp_gt_u32 vcc, {val}, v27\ns_cbranch_vccz L_{name}d")
        A(f"s_sleep {sleep}\ns_sub_u32 s58, s58, 1\ns_cbranch_scc0 L_{name}")
        A(f"L_{name}d:")
    A("L_qwait:")
    ldswait("wq", L_CNT, 5, 1)
    A("L_qpub:")
    if 'O' not in exp:
        for s in range(4):
            A(f"buffer_load_dwordx4 {vr(WO+4*s,4)}, v7, s[40:43], s45 offen nt")
            A(f"buffer_load_dwordx4 {vr(WO+4*(s+4),4)}, v7, s[40:43], s45 offen offset:1024 nt")
            if s < 3: A("s_add_u32 s45, s45, 0x2000")
    def ffnloads():
        A("s_cmp_eq_u32 s94, 0\ns_cbranch_scc1 L_nof")
        A(f"global_load_dwordx4 {vr(XB,4)}, v{WT+1}, s[8:9]")
        for s in range(8):
            A(f"buffer_load_dwordx4 {vr(UP+4*s,4)}, v{WT}, s[88:91], s92 offen nt")
            if s < 7: A("s_add_u32 s92, s92, s93")
        A("L_nof:")
    if 'e' in exp: ffnloads()
    if q0sleep: A(f"s_sleep {q0sleep}")
    if 'w' in exp: A("s_waitcnt vmcnt(0)")
    if 'Q' not in exp: poll("pq", [(f"global_load_dwordx4 {vr(WQ+4*i,4)}, v4, s[30:31] offset:{-4096 if i == 0 else 0} sc1", WQ + 4 * i + 2) for i in range(2)], qsleep)
    else: A("s_waitcnt vmcnt(0)")
    stamp(4, [1])
    A(f"s_lshl_b32 s54, s4, 8\nv_lshl_add_u32 v4, v1, 2, s54\nv_pk_add_f32 {vr(WQ,2)}, {vr(WQ,2)}, {vr(WQ+4,2)}\nv_cvt_pk_bf16_f32 v{WQ}, v{WQ}, v{WQ+1}")
    A(f"ds_write_b32 v4, v{WQ} offset:{L_Q}")
    A("s_waitcnt lgkmcnt(0)")
    stamp(5, [1])
    A("s_barrier")
    stamp(3, [0]); stamp(1, [2])
    if 'e' not in exp: ffnloads()
    permtile(WO, WT)
    A("s_waitcnt vmcnt(0)")
    A("v_and_b32 v4, 1, v1\ns_cmp_eq_u32 s94, 0\ns_cbranch_scc1 L_w1\ns_cmp_eq_u32 s94, 2\ns_cbranch_scc1 L_down")
    A("v_cmp_eq_u32 vcc, 1, v4\nv_mov_b32 v30, s60\nv_mov_b32 v31, s62\nv_mov_b32 v5, s61\nv_mov_b32 v6, s63")
    A("v_cndmask_b32 v30, v30, v31, vcc\nv_cndmask_b32 v31, v5, v6, vcc")
    normalize(XB, AO)
    A("s_branch L_ftile")
    A("L_down:")
    ldswait("wd", L_PRG, 48, 8)
    A(f"s_lshr_b32 s54, s95, 2\ns_lshl_b32 s54, s54, 14\ns_lshl_b32 s55, s4, 9\ns_add_u32 s54, s54, s55\ns_add_u32 s54, s54, {WS_G1+4096}")
    A("v_lshrrev_b32 v5, 5, v1\nv_lshlrev_b32 v5, 13, v5\nv_and_b32 v6, 31, v1\nv_lshl_add_u32 v5, v6, 4, v5\nv_add_u32 v5, s54, v5")
    if 'G' not in exp: poll("pg", [(f"global_load_dwordx4 {vr(D+4*i,4)}, v5, s[30:31] offset:{2048*i-4096} sc1", D + 4 * i + 2) for i in range(4)], 32)
    A(f"v_pk_add_f32 {vr(D,2)}, {vr(D,2)}, {vr(D+4,2)}\nv_pk_add_f32 {vr(D+8,2)}, {vr(D+8,2)}, {vr(D+12,2)}\nv_pk_add_f32 {vr(D,2)}, {vr(D,2)}, {vr(D+8,2)}")
    A(f"v_permlane32_swap_b32 v{D}, v{D+1}\nv_cvt_pk_bf16_f32 v24, v{D}, v{D+1}\nv_lshlrev_b32 v25, 16, v24\nv_and_b32 v24, s51, v24")
    A("v_max_f32 v25, 0, v25\nv_mul_f32 v24, v24, v25\nv_cvt_pk_bf16_f32 v24, v24, v24")
    A(f"s_lshl_b32 s54, s4, 7\ns_add_u32 s54, s54, {L_TP}\nv_lshl_add_u32 v5, v1, 1, s54\nv_lshl_add_u32 v6, v4, 6, s54\nv_lshl_add_u32 v6, v2, 4, v6")
    A(f"ds_write_b16 v5, v24\ns_waitcnt lgkmcnt(0)\nds_read_b128 {vr(AO,4)}, v6\ns_waitcnt lgkmcnt(0)")
    A("L_ftile:")
    permtile(UP, T); mfmatile(D, AO, T, True)
    A(f"v_add_u32 v5, {L_FP-L_YR}, v29\nv_add_u32 v6, {L_FP-L_YR+2048}, v29\nv_mov_b32 v24, 0\nv_mov_b32 v25, 1")
    A("s_mov_b64 exec, 0xffff")
    row0_write(5, D, 0, 0); row0_write(6, D, 1, 0)
    A("s_mov_b64 exec, 1\ns_waitcnt lgkmcnt(0)")
    A(f"ds_add_rtn_u32 v27, v24, v25 offset:{L_CNT+4}\ns_waitcnt lgkmcnt(0)")
    A("v_readfirstlane_b32 s54, v27\ns_mov_b64 exec, -1\ns_cmp_eq_u32 s54, 3\ns_cbranch_scc0 L_w1")
    A(f"v_lshlrev_b32 v5, 2, v1\nv_add_u32 v5, {L_FP}, v5")
    for hf in range(2):
        for i in range(4): A(f"ds_read2st64_b32 {vr(WQ+8*hf+2*i,2)}, v5 offset0:{2*i+hf} offset1:{8+2*i+hf}")
    A("v_lshl_add_u32 v5, v1, 4, s59\ns_waitcnt lgkmcnt(0)")
    for hf in range(2):
        r = WQ + 8 * hf
        A(f"v_pk_add_f32 {vr(r,2)}, {vr(r,2)}, {vr(r+2,2)}\nv_pk_add_f32 {vr(r+4,2)}, {vr(r+4,2)}, {vr(r+6,2)}\nv_pk_add_f32 {vr(r,2)}, {vr(r,2)}, {vr(r+4,2)}\nv_mov_b32 v{r+2}, {TAG}")
    if 'S' not in exp: A(f"global_store_dwordx4 v5, {vr(WQ,4)}, s[30:31] sc1\nglobal_store_dwordx4 v5, {vr(WQ+8,4)}, s[30:31] offset:1024 sc1")
    def rbf(r): A(f"v_cvt_pk_bf16_f32 v{r}, v{r}, v{r}\nv_and_b32 v{r}, s51, v{r}")
    G, XV, OA, H2A = 224, 225, 226, 227
    A("L_w1:")
    if ctl:
        A("s_cmp_eq_u32 s4, 3\ns_cbranch_scc0 L_noctl")
        A("s_lshr_b32 s54, s2, 5\ns_lshl_b32 s54, s54, 3\ns_add_u32 s57, s54, s32")
        A(f"s_mul_i32 s56, s57, {ctl_int}\ns_lshr_b32 s56, s56, 6\ns_add_u32 s56, s56, {ctl_t0}")
        A("s_bfe_u32 s55, s2, 0x20003\ns_lshl_b32 s55, s55, 6")
        A("L_ctl:")
        ldswait("wc", L_PRG, "s56", 2)
        A("s_mov_b32 s54, 1\ns_atomic_add s54, s[28:29], s55 glc\ns_waitcnt lgkmcnt(0)")
        A("s_sub_i32 s54, s57, s54")
        A(f"s_cmp_gt_i32 s54, {ctl_d[0]}\ns_cselect_b32 s48, 1, 0")
        if len(ctl_d) > 1: A(f"s_cmp_gt_i32 s54, {ctl_d[1]}\ns_cselect_b32 s48, 2, s48")
        A(f"v_mov_b32 v27, s48\nds_write_b32 v24, v27 offset:{L_MODE}")
        A(f"s_add_u32 s57, s57, 64\ns_add_u32 s56, s56, {ctl_int}\ns_cmp_le_u32 s56, 424\ns_cbranch_scc1 L_ctl")
        A("L_noctl:")
    A("s_cmp_eq_u32 s4, 1\ns_cbranch_scc0 L_tail\ns_cmp_lt_u32 s2, 128\ns_cbranch_scc0 L_tail")
    A("s_lshr_b32 s56, s2, 6\ns_and_b32 s57, s2, 63")
    A("v_and_b32 v4, 3, v1\nv_lshrrev_b32 v5, 2, v1\nv_lshlrev_b32 v5, 12, v5\nv_lshl_add_u32 v5, v4, 4, v5")
    A(f"s_lshl_b32 s54, s57, 6\ns_lshl_b32 s55, s56, 17\ns_add_u32 s55, s55, s54\ns_add_u32 s55, s55, {WS_H2}\nv_add_u32 v{H2A}, s55, v5\nv_add_u32 v{H2A+1}, 0x10000, v{H2A}")
    A("v_lshrrev_b32 v6, 5, v1\nv_lshl_add_u32 v6, v4, 1, v6")
    A(f"s_lshl_b32 s54, s2, 4\nv_lshl_add_u32 v{OA}, v6, 1, s54\nv_lshlrev_b32 v6, 2, v6")
    A(f"global_load_ushort v{XV}, v{OA}, s[8:9]")
    A(f"s_lshl_b32 s54, s57, 7\ns_add_u32 s54, s54, {WS_F}\nv_lshrrev_b32 v5, 3, v1\nv_lshlrev_b32 v5, 13, v5\nv_and_b32 v7, 7, v1\nv_lshl_add_u32 v5, v7, 4, v5\nv_add_u32 v5, s54, v5\nv_add_u32 v7, 0x10000, v5")
    A(f"v_mov_b32 v20, 0\nv_mov_b32 v21, 0")
    if noffn or 'F' in exp: A("s_branch L_tail")
    ldswait("wf", L_PRG, 160, 16)
    poll("pf", [("global_load_dwordx4 v[16:19], v5, s[30:31] sc1", 18), ("global_load_dwordx4 v[20:23], v7, s[30:31] sc1", 22)], 64, [-1, (1 << 48) - 1])
    A("v_pk_add_f32 v[16:17], v[16:17], v[20:21]")
    A("s_cmp_eq_u32 s56, 0\ns_cselect_b64 vcc, 0, -1\nv_cndmask_b32 v8, v16, v17, vcc")
    A("v_add_f32_dpp v8, v8, v8 row_ror:8 row_mask:0xf bank_mask:0xf")
    xrow([8], 9)
    rbf(8)
    A(f"v_mul_f32 v9, s53, v8\nv_exp_f32 v9, -v9\nv_add_f32 v9, 1.0, v9\nv_rcp_f32 v9, v9\nv_mul_f32 v8, v8, v9")
    rbf(8)
    A(f"ds_bpermute_b32 v{G}, v6, v8\nv_lshlrev_b32 v{XV}, 16, v{XV}")
    A("L_tail:")
    A(f"s_lshl_b32 s54, s4, 9\nv_add_u32 v4, s54, v28\ns_lshl_b32 s55, s4, 5\nv_mov_b32 v5, s55")
    A(f"s_lshl_b32 s56, s35, 16\ns_add_u32 s56, s56, {WS_H1}\ns_lshl_b32 s57, s4, 14\ns_add_u32 s57, s57, s56\ns_lshl_b32 s58, s34, 8\ns_add_u32 s57, s57, s58")
    A("v_lshlrev_b32 v6, 12, v2\nv_lshl_add_u32 v6, v3, 4, v6\nv_add_u32 v6, s57, v6")
    A("s_lshl_b32 s58, s7, 12\ns_add_u32 s56, s56, s58\nv_lshl_add_u32 v26, v1, 4, s56\nv_lshl_add_u32 v27, v1, 8, s56")
    A(f"s_lshl_b32 s56, s35, 2\ns_add_u32 s56, s56, s5\ns_lshl_b32 s56, s56, 12\ns_lshl_b32 s57, s6, 10\ns_add_u32 s56, s56, s57\ns_add_u32 s56, s56, {WS_H2}\nv_lshl_add_u32 v25, v1, 4, s56")
    A(f"v_mov_b32 v50, {TAG}")
    A("s_waitcnt vmcnt(0) lgkmcnt(0)")
    stamp(2, [2])
    A("s_barrier")
    stamp(4, [0]); stamp(3, [2])
    A(f"ds_read_b128 v[40:43], v5 offset:{L_ML}\nds_read_b128 v[44:47], v5 offset:{L_ML+16}")
    for i in range(4): A(f"ds_read_b64 {vr(32+2*i,2)}, v4 offset:{L_OP+2048*i}")
    A("s_waitcnt lgkmcnt(0)" if stamps else "s_waitcnt lgkmcnt(4)")
    A("v_max3_f32 v51, v40, v42, v44\nv_max_f32 v51, v51, v46")
    for i in range(4): A(f"v_sub_f32 v{40+2*i}, v{40+2*i}, v51")
    for i in range(4): A(f"v_exp_f32 v{40+2*i}, v{40+2*i}")
    A("v_mul_f32 v41, v40, v41")
    for i in range(1, 4): A(f"v_fmac_f32 v41, v{40+2*i}, v{41+2*i}")
    A("v_rcp_f32 v52, v41\nv_log_f32 v53, v41")
    A("s_waitcnt lgkmcnt(0)")
    A("v_pk_mul_f32 v[48:49], v[32:33], v[40:41] op_sel_hi:[1,0]")
    for i in range(1, 4): A(f"v_pk_fma_f32 v[48:49], {vr(32+2*i,2)}, {vr(40+2*i,2)}, v[48:49] op_sel_hi:[1,0,1]")
    A("v_add_f32 v51, v51, v53\nv_pk_mul_f32 v[48:49], v[48:49], v[52:53] op_sel_hi:[1,0]")
    A("global_store_dwordx4 v6, v[48:51], s[30:31] sc1")
    if lim >= 0:
        A("s_cmp_eq_u32 s4, 0\ns_cbranch_scc0 L_lpd")
        A(f"s_mov_b32 s58, {spin}\ns_mov_b64 exec, 0xffff")
        A("L_lp:")
        A(f"global_load_dword v12, v27, s[30:31] offset:8 sc1\ns_waitcnt vmcnt(0)\nv_cmp_ne_u32 vcc, {TAG}, v12\ns_mov_b64 exec, vcc\ns_bcnt1_i32_b64 s54, vcc")
        A(f"s_cmp_le_u32 s54, {lim}\ns_cbranch_scc1 L_lpe\ns_sub_u32 s58, s58, 1\ns_cbranch_scc0 L_lp")
        A("L_lpe:\ns_mov_b64 exec, -1\nL_lpd:\ns_barrier")
    poll("p1", [(f"global_load_dwordx4 {vr(64+4*i,4)}, v26, s[30:31] offset:{1024*i} sc1", 64 + 4 * i + 2) for i in range(4)], psleep)
    stamp(5, [0]); stamp(4, [2])
    A("v_max3_f32 v62, v67, v71, v75\nv_max_f32 v62, v62, v79")
    A("v_mov_b32 v63, v62\nv_permlane32_swap_b32 v62, v63\nv_max_f32 v62, v62, v63\nv_mov_b32 v63, v62\nv_permlane16_swap_b32 v62, v63\nv_max_f32 v62, v62, v63")
    for i in range(4): A(f"v_sub_f32 v{66+4*i}, v{67+4*i}, v62")
    for i in range(4): A(f"v_exp_f32 v{66+4*i}, v{66+4*i}")
    A("v_pk_mul_f32 v[52:53], v[64:65], v[66:67] op_sel_hi:[1,0]\nv_add_f32 v54, v66, v70")
    for i in range(1, 4): A(f"v_pk_fma_f32 v[52:53], {vr(64+4*i,2)}, {vr(66+4*i,2)}, v[52:53] op_sel_hi:[1,0,1]")
    A("v_add_f32 v55, v74, v78\nv_add_f32 v54, v54, v55")
    xrow([54, 52, 53], 56)
    A("v_rcp_f32 v54, v54\nv_pk_mul_f32 v[52:53], v[52:53], v[54:55] op_sel_hi:[1,0]\nv_cvt_pk_bf16_f32 v52, v52, v53")
    for g in range(4):
        for t in range(4): A(f"v_mov_b32_dpp v{AO+t}, v52 row_newbcast:{4*g+t} row_mask:{hex(1<<g)} bank_mask:0xf")
    mfmatile(D, AO, WT, True)
    A("s_mov_b64 exec, 0xffff")
    row0_write(29, D, 0, 0)
    A("s_mov_b64 exec, -1\ns_waitcnt lgkmcnt(0)")
    A("s_barrier")
    stamp(5, [2])
    A("s_cmp_eq_u32 s4, 0\ns_cbranch_scc0 L_fin")
    for i in range(4): A(f"ds_read_b64 {vr(XA+2*i,2)}, v28 offset:{L_YR+512*i}")
    A("s_waitcnt lgkmcnt(0)")
    A(f"v_pk_add_f32 {vr(XA,2)}, {vr(XA,2)}, {vr(XA+2,2)}\nv_pk_add_f32 {vr(XA+4,2)}, {vr(XA+4,2)}, {vr(XA+6,2)}\nv_mov_b32 v{XA+2}, {TAG}\nv_pk_add_f32 {vr(XA,2)}, {vr(XA,2)}, {vr(XA+4,2)}")
    A(f"global_store_dwordx4 v25, {vr(XA,4)}, s[30:31] sc1")
    A("s_branch L_end")
    A("L_fin:")
    A("s_cmp_eq_u32 s4, 1\ns_cbranch_scc0 L_bump\ns_cmp_lt_u32 s2, 128\ns_cbranch_scc0 L_end")
    poll("p2", [(f"global_load_dwordx4 v[16:19], v{H2A}, s[30:31] sc1", 18), (f"global_load_dwordx4 v[20:23], v{H2A+1}, s[30:31] sc1", 22)], psleep)
    A("v_pk_add_f32 v[16:17], v[16:17], v[20:21]\nv_permlane32_swap_b32 v16, v17\nv_add_f32 v8, v16, v17")
    A("v_mov_b32 v9, v8\nv_permlane16_swap_b32 v8, v9\nv_add_f32 v8, v8, v9")
    for n_ in (4, 8): A(f"v_add_f32_dpp v8, v8, v8 row_ror:{n_} row_mask:0xf bank_mask:0xf")
    rbf(8)
    A(f"v_mul_f32 v8, v8, v{G}"); rbf(8)
    A(f"v_add_f32 v8, v8, v{XV}\nv_cvt_pk_bf16_f32 v8, v8, v8")
    A("s_mov_b32 exec_lo, 15\ns_mov_b32 exec_hi, 15")
    A(f"global_store_short v{OA}, v8, s[26:27]")
    A("s_branch L_end")
    A("L_bump:")
    A("s_cmp_eq_u32 s4, 2\ns_cbranch_scc0 L_end\ns_cmp_eq_u32 s2, 255\ns_cbranch_scc0 L_end")
    A(f"v_lshlrev_b32 v4, 14, v1\nv_add_u32 v4, {WS_H2}, v4")
    poll("p3", [("global_load_dwordx4 v[16:19], v4, s[30:31] sc1", 18)], 1, [0xffff])
    A(f"s_mov_b64 exec, 1\nv_mov_b32 v4, {WS_E}\nglobal_store_dword v4, v50, s[30:31] sc1")
    A("L_end:")
    if stamps:
        A("s_waitcnt vmcnt(0)")
        stamp(6)
        A("L_stamps:")
        A("s_getreg_b32 s78, hwreg(HW_REG_XCC_ID)\ns_mov_b32 s79, 0")
        A("s_waitcnt lgkmcnt(0)\ns_mov_b64 exec, 1\ns_lshl_b32 s54, s2, 3\ns_add_u32 s54, s54, s3\ns_lshl_b32 s54, s54, 6\ns_add_u32 s54, s54, 0x10000000\nv_mov_b32 v4, s54")
        for i in range(4):
            for k in range(4): A(f"v_mov_b32 v{8+k}, s{64+4*i+k}")
            A(f"global_store_dwordx4 v4, v[8:11], s[30:31] offset:{16*i}")
    A("L_exit:")
    A("s_endpgm")
    A.check_all_edges()
    out = HEADER
    out += f"; @launch grid=(256,1,1) block=(512,1,1) lds={L_SIZE}\n"
    out += f'.amdgcn_target "amdgcn-amd-amdhsa--gfx950"\n.text\n.globl {NAME}_kernel\n.p2align 8\n.type {NAME}_kernel,@function\n'
    out += A.text()
    out += f""".section .rodata,"a"
.p2align 6
.amdhsa_kernel {NAME}_kernel
  .amdhsa_next_free_vgpr 240
  .amdhsa_next_free_sgpr 100
  .amdhsa_accum_offset 240
  .amdhsa_group_segment_fixed_size 0
  .amdhsa_kernarg_size 96
  .amdhsa_user_sgpr_count 2
  .amdhsa_user_sgpr_kernarg_segment_ptr 1
  .amdhsa_system_sgpr_workgroup_id_x 1
  .amdhsa_float_denorm_mode_32 3
.end_amdhsa_kernel
"""
    return out

if __name__ == "__main__":
    ap = argparse.ArgumentParser()
    ap.add_argument("out"); ap.add_argument("--stamps", action="store_true"); ap.add_argument("--nomimic", action="store_true")
    ap.add_argument("--thr", type=int, default=4); ap.add_argument("--sset", type=int, default=0); ap.add_argument("--qsleep", type=int, default=0); ap.add_argument("--psleep", type=int, default=0); ap.add_argument("--noffn", action="store_true"); ap.add_argument("--R", type=int, default=16); ap.add_argument("--rot", type=int, default=2); ap.add_argument("--trk", type=int, default=2); ap.add_argument("--q0sleep", type=int, default=0); ap.add_argument("--exp", default=""); ap.add_argument("--RV", type=int, default=4); ap.add_argument("--lim", type=int, default=2); ap.add_argument("--ctl", default="")
    a = ap.parse_args()
    ck = {}
    if a.ctl:
        p = a.ctl.split("/")
        ck = dict(ctl=True, ctl_thr=[int(x) for x in p[0].split(",")], ctl_d=[int(x) for x in p[1].split(",")], ctl_int=int(p[2]), ctl_t0=int(p[3]))
    open(a.out, "w").write(gen(stamps=a.stamps, mimic=not a.nomimic, thr=a.thr, sset=a.sset, qsleep=a.qsleep, psleep=a.psleep, noffn=a.noffn, R=a.R, rot=a.rot, trk=a.trk, q0sleep=a.q0sleep, exp=a.exp, RV=a.RV, lim=a.lim, **ck))
```

```python
import sys, argparse
from asmlib import Asm
NAME = "recurrent_scan__gqa_block_cached__glu_gated_reglu__decode"

HEADER = open("cdna_kernels/" + NAME + ".s.ref").read().split("; Override launch")[0]

WS_QP = 0x0
WS_G1 = 0x90000
WS_F = 0x20000
WS_H2 = 0x40000
WS_E = 0x80000
WS_H1 = 0x100000
L_PRG = 0; L_CNT = 1408; L_MODE = 1416; L_Q = 256; L_ML = 1280; L_TP = 1536; L_YR = 2048; L_OP = 4096; L_FP = 12288; L_SC = 16384; L_SIZE = 32768

def gen(stamps=False, mimic=True, thr=4, spin=1 << 16, sset=0, qsleep=0, psleep=0, noffn=False, R=16, rot=2, trk=2, q0sleep=0, exp='', RV=4, lim=2, ctl=False, ctl_thr=(3, 2), ctl_d=(8, 24), ctl_int=32, ctl_t0=80, pol='ndd'):
    PK, PV, PW = [{'n': 'nt', 'd': ''}[c] for c in pol]
    A = Asm()
    nst = [0]
    def stamp(i, sets=None):
        if stamps and (sets is None or sset in sets): A(f"s_memrealtime s[{64+2*i}:{65+2*i}]")
    def vr(a, n): return f"v[{a}:{a+n-1}]"
    lab = [0]
    def newlab(p):
        lab[0] += 1; return f"L_{p}{lab[0]}"

    A(f"{NAME}_kernel:")
    stamp(0)
    A("s_cmp_ge_u32 s2, 256\ns_cbranch_scc1 L_exit")
    A("s_load_dwordx16 s[8:23], s[0:1], 0\ns_load_dwordx8 s[24:31], s[0:1], 64")
    A("v_lshrrev_b32 v4, 6, v0\nv_and_b32 v1, 63, v0\nv_mov_b32 v6, 0\nv_readfirstlane_b32 s3, v4\nv_mov_b32 v7, 0")
    A(f"ds_write_b64 v6, v[6:7] offset:{L_CNT}\nds_write_b64 v6, v[6:7] offset:{L_MODE}")
    A("ds_write_b64 v6, v[6:7]")
    A("s_and_b32 s32, s2, 7\ns_bfe_u32 s33, s2, 0x10003\ns_lshr_b32 s34, s2, 4\ns_lshl_b32 s35, s33, 3\ns_add_u32 s35, s35, s32")
    A("v_lshrrev_b32 v2, 4, v1\nv_and_b32 v3, 15, v1")
    A("s_mov_b32 s49, 0x05040100\ns_mov_b32 s50, 0x07060302\ns_mov_b32 s51, 0xffff0000\ns_mov_b32 s53, 0x3fb8aa3b")
    A("s_mov_b32 s39, 0x20000\ns_mov_b32 s43, 0x20000")
    A("s_cmp_ge_u32 s3, 4\ns_cbranch_scc1 L_aux")

    Q, P, M, Lr, S, TD, D, O, T, RING = 4, 8, 12, 13, 20, 28, 32, 48, 80, 112
    def RB(slot, u): return RING + 8 * slot + 4 * u
    A("s_lshl_b32 s54, s35, 4\ns_add_u32 s54, s54, s34")
    A(f"s_mul_i32 s44, s54, {rot * 8192}\ns_and_b32 s44, s44, 0x7ffff\ns_lshl_b32 s54, s54, 19")
    A("s_lshl_b32 s55, s3, 11")
    A("v_lshrrev_b32 v14, 2, v3\nv_lshlrev_b32 v14, 8, v14\nv_and_b32 v15, 3, v1\nv_lshlrev_b32 v15, 4, v15")
    A("v_lshl_add_u32 v14, v2, 6, v14\nv_add3_u32 v14, v14, v15, s55")
    A("s_mov_b32 s38, 0x80000")
    A("s_waitcnt lgkmcnt(0)")
    A("s_add_u32 s36, s10, s54\ns_addc_u32 s37, s11, 0\ns_and_b32 s37, s37, 0xffff")
    def issue(slot, pol=None):
        for u in range(2):
            A(f"buffer_load_dwordx4 {vr(RB(slot,u),4)}, v14, s[36:39], s44 offen offset:{u*1024} {PK if pol is None else pol}")
        A("s_add_u32 s44, s44, 0x2000\ns_and_b32 s44, s44, 0x7ffff")
        if prog: A(f"ds_add_u32 v0, v15 offset:{L_PRG}")
    def throttle():
        if not ctl:
            A(f"s_waitcnt vmcnt({thr})"); return
        l_ = newlab("th"); c_ = A.counted
        A(f"s_waitcnt vmcnt({thr})\ns_cmp_eq_u32 s45, 0\ns_cbranch_scc1 {l_}")
        A.counted = False
        if len(ctl_thr) > 1: A(f"s_waitcnt vmcnt({ctl_thr[0]})\ns_cmp_eq_u32 s45, 1\ns_cbranch_scc1 {l_}")
        A(f"s_waitcnt vmcnt({ctl_thr[-1]})")
        A(f"{l_}:"); A.counted = c_
    prog = False
    for n in range(R):
        if 2 * n > thr: A(f"s_waitcnt vmcnt({thr})")
        issue(n)
        if n == 2:
            A("s_barrier")
            A("s_add_u32 s40, s12, s54\ns_addc_u32 s41, s13, 0\ns_and_b32 s41, s41, 0xffff")
            for i in range(32): A(f"v_mov_b32 v{O+i}, 0")
            A(f"v_mov_b32 v{M}, 0xff7fffff\nv_mov_b32 v{Lr}, 0")
            A("v_and_b32 v16, 3, v1\nv_lshlrev_b32 v16, 8, v16\nv_lshrrev_b32 v17, 2, v1\nv_lshl_add_u32 v16, v17, 4, v16")
            A(f"s_lshl_b32 s56, s3, 12\ns_add_u32 s56, s56, {L_SC}\nv_lshl_add_u32 v19, v2, 6, v15\nv_add_u32 v19, s56, v19")
            A("s_mov_b32 s52, 0x3db504f3\ns_mov_b32 s48, 0\ns_mov_b32 s46, 0x000f000f\ns_mov_b32 s47, 0x000f000f")
    stamp(1)
    A("s_barrier")
    A(f"ds_read_b128 {vr(Q,4)}, v16 offset:{L_Q}")
    A("s_waitcnt lgkmcnt(0)")
    stamp(2)
    NIT = 64 // R
    def dpp(k):
        d0 = D + 8 * (k & 1); d1 = d0 + 4
        A(f"v_add_f32_dpp v{TD}, v{d0+3}, v{d0+2} row_shl:4 row_mask:0xf bank_mask:0xf bound_ctrl:0")
        A(f"v_add_f32_dpp v{TD+1}, v{d1+3}, v{d1+2} row_shl:4 row_mask:0xf bank_mask:0xf bound_ctrl:0")
        A(f"v_add_f32_dpp v{TD+2}, v{d0+1}, v{d0} row_shl:4 row_mask:0xf bank_mask:0xf bound_ctrl:0")
        A(f"v_add_f32_dpp v{TD+3}, v{d1+1}, v{d1} row_shl:4 row_mask:0xf bank_mask:0xf bound_ctrl:0")
    def fin(k):
        A(f"v_add_f32_dpp v{S}, v{TD}, v{TD+2} row_shl:8 row_mask:0xf bank_mask:0xf bound_ctrl:0")
        A(f"v_add_f32_dpp v{S+1}, v{TD+1}, v{TD+3} row_shl:8 row_mask:0xf bank_mask:0xf bound_ctrl:0")
        A(f"v_cvt_pk_bf16_f32 v16, v{S}, v{S+1}\nv_lshlrev_b32 v{S}, 16, v16\nv_and_b32 v{S+1}, s51, v16")
        A(f"v_mul_f32 v{S}, s52, v{S}\nv_mul_f32 v{S+1}, s52, v{S+1}")
        A(f"v_cvt_pk_bf16_f32 v{P+(k&3)}, v{S}, v{S+1}\nv_max3_f32 v{M}, v{M}, v{S}, v{S+1}")
        if k & 3 == 3:
            A(f"s_mov_b64 exec, s[46:47]\nds_write_b128 v19, {vr(P,4)} offset:{256*(k>>2)}\ns_mov_b64 exec, -1")
    ST = R // RV
    A("s_mov_b64 vcc, 0\nv_mov_b32 v17, 0\nv_mov_b32 v15, 1\ns_mov_b32 s45, 0\nv_lshlrev_b32 v0, 2, v1")
    prog = True
    A("L_kloop:")
    for k in range(R):
        d0 = D + 8 * (k & 1)
        if k > 0: dpp(k - 1)
        A(f"v_mfma_f32_16x16x32_bf16 {vr(d0,4)}, {vr(RB(k,0),4)}, {vr(Q,4)}, 0")
        A(f"v_mfma_f32_16x16x32_bf16 {vr(d0+4,4)}, {vr(RB(k,1),4)}, {vr(Q,4)}, 0")
        if k % ST != ST - 1:
            l1 = newlab("ks"); A(f"s_cbranch_vccnz {l1}"); A.counted = False
        throttle()
        issue(k)
        if k % ST != ST - 1:
            A(f"{l1}:"); A.counted = True
        if ctl and k & 3 == 1: A(f"ds_read_b32 v18, v17 offset:{L_MODE}")
        if ctl and k & 3 == 2: A("s_waitcnt lgkmcnt(0)\nv_readfirstlane_b32 s45, v18")
        if k > 0: fin(k - 1)
    dpp(R - 1); fin(R - 1)
    A(f"s_add_u32 s48, s48, 1\nv_add_u32 v19, {64*R}, v19")
    A(f"s_cmp_lt_u32 s48, {NIT-1}\ns_cbranch_scc1 L_kloop")
    A(f"s_cmp_eq_u32 s48, {NIT-1}\ns_cbranch_scc0 L_kdone")
    A("s_mov_b32 s36, s40\ns_mov_b32 s37, s41\nv_lshl_add_u32 v14, v1, 4, s55\ns_mov_b64 vcc, -1\ns_branch L_kloop")
    A("L_kdone:")
    A(f"v_cvt_pk_bf16_f32 v{M}, v{M}, v{M}\nv_and_b32 v{M}, s51, v{M}\nv_add_u32 v19, -4096, v19")
    A(f"v_mov_b32 v18, v{M}\nv_permlane32_swap_b32 v{M}, v18\nv_max_f32 v{M}, v{M}, v18\nv_mov_b32 v18, v{M}\nv_permlane16_swap_b32 v{M}, v18\nv_max_f32 v{M}, v{M}, v18")
    for n_ in (4, 8, 12): A(f"v_mov_b32_dpp v{M}, v{M} row_shr:{n_} row_mask:0xf bank_mask:{hex(1 << (n_ // 4))}")
    A(f"v_mul_f32 v{M}, s53, v{M}")
    A("s_mov_b32 s48, 0\ns_mov_b64 vcc, 0\ns_waitcnt lgkmcnt(0)")
    stamp(5, [3])
    assert thr <= 2 * (RV - 2)
    def VP(k): return ST * k + ST - 1
    def perms(k):
        t = k & 3
        for d in range(4):
            A(f"v_perm_b32 v{T+4*(2*d)+t}, v{RB(VP(k),1)+d}, v{RB(VP(k),0)+d}, s49")
            A(f"v_perm_b32 v{T+4*(2*d+1)+t}, v{RB(VP(k),1)+d}, v{RB(VP(k),0)+d}, s50")
    nfl = (thr + 3) // 2
    def tail(k):
        rem = RV - 1 - (k + 1)
        lastwait = 2 * rem if (0 <= rem < nfl) else None
        l1 = newlab("sk")
        A(f"s_cbranch_vccnz {l1}")
        A.counted = False
        throttle()
        issue(VP(k), PV)
        if lastwait is not None:
            l2 = newlab("jn")
            A(f"s_branch {l2}\n{l1}:\ns_waitcnt vmcnt({lastwait})\n{l2}:")
        else:
            A(f"{l1}:")
        A.counted = True
    A("L_vloop:")
    for k in range(RV):
        t = k & 3
        if t == 0:
            A(f"ds_read_b128 {vr(TD,4)}, v19 offset:{256*(k>>2)}")
            if ctl: A(f"ds_read_b32 v18, v17 offset:{L_MODE}")
            perms(k)
        elif t == 1:
            perms(k)
            A("s_waitcnt lgkmcnt(0)")
            if ctl: A("v_readfirstlane_b32 s45, v18")
            for i in range(4): A(f"v_lshlrev_b32 v{S+2*i}, 16, v{TD+i}\nv_and_b32 v{S+2*i+1}, s51, v{TD+i}")
            for i in range(8): A(f"v_fma_f32 v{S+i}, v{S+i}, s53, -v{M}")
            for i in range(8): A(f"v_exp_f32 v{S+i}, v{S+i}")
        elif t == 2:
            perms(k)
            for i in range(4): A(f"v_cvt_pk_bf16_f32 v{P+i}, v{S+2*i}, v{S+2*i+1}")
            A(f"v_pk_add_f32 {vr(S,2)}, {vr(S,2)}, {vr(S+2,2)}\nv_pk_add_f32 {vr(S+4,2)}, {vr(S+4,2)}, {vr(S+6,2)}")
            A(f"v_pk_add_f32 {vr(S,2)}, {vr(S,2)}, {vr(S+4,2)}\nv_add_f32 v{Lr}, v{Lr}, v{S}\nv_add_f32 v{Lr}, v{Lr}, v{S+1}")
        else:
            perms(k)
            for e in range(8):
                A(f"v_mfma_f32_16x16x32_bf16 {vr(O+4*e,4)}, {vr(T+4*e,4)}, {vr(P,4)}, {vr(O+4*e,4)}")
        tail(k)
    A(f"v_add_u32 v19, {64*RV}, v19")
    A(f"s_add_u32 s48, s48, 1\ns_cmp_eq_u32 s48, {64//RV-1}\ns_cselect_b64 vcc, -1, 0\ns_cmp_lt_u32 s48, {64//RV}\ns_cbranch_scc1 L_vloop")
    stamp(3)
    A(f"v_mov_b32 v18, v{Lr}\nv_lshlrev_b32 v16, 9, v3\nv_lshl_add_u32 v16, v2, 7, v16\nv_permlane32_swap_b32 v{Lr}, v18\nv_add_f32 v{Lr}, v{Lr}, v18")
    A(f"v_mov_b32 v18, v{Lr}\nv_add_u32 v16, s55, v16\ns_lshl_b32 s56, s3, 3\nv_lshlrev_b32 v17, 5, v3\nv_permlane16_swap_b32 v{Lr}, v18\nv_add_f32 v{Lr}, v{Lr}, v18")
    A("v_add_u32 v17, s56, v17")
    A("s_mov_b32 exec_lo, 0x000f000f\ns_mov_b32 exec_hi, 0x000f000f")
    for e in range(8): A(f"ds_write_b128 v16, {vr(O+4*e,4)} offset:{L_OP+16*e}")
    A(f"ds_write_b64 v17, {vr(M,2)} offset:{L_ML}")
    A("s_waitcnt lgkmcnt(0)")
    A("s_barrier")
    if stamps:
        stamp(4); stamp(5, [0, 1, 2]); stamp(6); A("s_branch L_stamps")
    else:
        A("s_endpgm")

    XA, XB, AO, WQ, WO, T, D, WT, UP, U = 8, 16, 20, 32, 64, 96, 128, 160, 192, 224
    TAG = "s46"
    A("L_aux:")
    A("s_sub_u32 s4, s3, 4")
    A("s_lshr_b32 s5, s34, 2\ns_and_b32 s6, s34, 3")
    A("s_lshl_b32 s7, s5, 2\ns_add_u32 s7, s7, s4")
    A("v_lshlrev_b32 v4, 5, v1")
    A("v_lshrrev_b32 v24, 3, v3\nv_lshl_add_u32 v24, v24, 2, v2\nv_and_b32 v25, 7, v1")
    A("s_and_b32 s56, s34, 1\ns_lshl_b32 s57, s56, 2\ns_add_u32 s57, s57, s4")
    A("s_lshl_b32 s54, s33, 10\ns_lshl_b32 s55, s57, 7\ns_add_u32 s54, s54, s55\nv_lshl_add_u32 v5, v24, 4, s54")
    A("v_lshlrev_b32 v25, 4, v25\nv_lshl_add_u32 v6, v24, 16, v25\nv_lshlrev_b32 v7, 4, v3\nv_lshl_add_u32 v7, v2, 11, v7")
    A("s_lshl_b32 s44, s57, 19\ns_lshl_b32 s55, s32, 10\ns_add_u32 s44, s44, s55\ns_lshr_b32 s57, s34, 1\ns_lshl_b32 s55, s57, 7\ns_add_u32 s44, s44, s55")
    A("s_lshl_b32 s55, s6, 8\ns_lshl_b32 s45, s32, 4\ns_add_u32 s45, s45, s7\ns_lshl_b32 s45, s45, 15\ns_add_u32 s45, s45, s55")
    A("s_mov_b32 s38, 0x400000\ns_mov_b32 s42, 0x400000")
    A("s_waitcnt lgkmcnt(0)")
    A(f"global_load_dwordx4 {vr(XA,4)}, v4, s[8:9]\nglobal_load_dwordx4 {vr(XA+4,4)}, v4, s[8:9] offset:16\nglobal_load_dwordx4 {vr(XB,4)}, v5, s[8:9]")
    A("s_mov_b32 s36, s14\ns_and_b32 s37, s15, 0xffff\ns_mov_b32 s40, s16\ns_and_b32 s41, s17, 0xffff")
    for s in range(8):
        if 'W' not in exp: A(f"buffer_load_dwordx4 {vr(WQ+4*s,4)}, v6, s[36:39], s44 offen {PW}")
        if s < 7: A("s_add_u32 s44, s44, 0x2000")
    A(f"s_load_dword s47, s[30:31], {WS_E}")
    A("s_barrier")
    A(f"s_lshl_b32 s54, s4, 9\ns_add_u32 s54, s54, {L_YR}\nv_lshl_add_u32 v29, v3, 5, s54")
    A("v_lshlrev_b32 v28, 3, v1")
    A("s_lshr_b32 s95, s2, 1\ns_mov_b32 s90, 0x1c0000\ns_mov_b32 s91, 0x20000")
    A("s_bitcmp0_b32 s95, 2\ns_cselect_b32 s88, s20, s22\ns_cselect_b32 s89, s21, s23")
    A("s_and_b32 s55, s95, 3\ns_lshl_b32 s54, s55, 2\ns_add_u32 s54, s54, s4")
    A(f"v_and_b32 v{WT+1}, 1, v1\nv_lshlrev_b32 v{WT+1}, 10, v{WT+1}\nv_lshl_add_u32 v{WT+1}, v2, 4, v{WT+1}\ns_lshl_b32 s92, s54, 6\nv_add_u32 v{WT+1}, s92, v{WT+1}")
    A("s_mul_i32 s92, s54, 0x1c000\ns_lshr_b32 s54, s95, 3\ns_lshl_b32 s54, s54, 8\ns_add_u32 s92, s92, s54\ns_movk_i32 s93, 0xe00")
    A(f"s_mov_b32 s59, {WS_G1}\ns_cmp_lt_u32 s95, 112\ns_cselect_b32 s94, 1, 0")
    A("s_bitcmp1_b32 s2, 0\ns_cbranch_scc0 L_role")
    A("s_mov_b32 s88, s24\ns_mov_b32 s89, s25\ns_and_b32 s54, s95, 0xfc\ns_add_u32 s54, s54, s4\ns_lshl_b32 s92, s54, 15\ns_lshl_b32 s55, s55, 8\ns_add_u32 s92, s92, s55\ns_movk_i32 s93, 0x400")
    A(f"s_mov_b32 s59, {WS_F}\ns_cmp_lt_u32 s95, 56\ns_cselect_b32 s94, 2, 0")
    A("L_role:")
    if noffn: A("s_mov_b32 s94, 0")
    A(f"s_and_b32 s89, s89, 0xffff\ns_lshl_b32 s54, s95, 11\ns_add_u32 s59, s59, s54\ns_lshl_b32 s54, s93, 3\nv_mul_u32_u24 v{WT}, s54, v2\nv_lshl_add_u32 v{WT}, v3, 4, v{WT}")
    A("s_waitcnt vmcnt(9)")
    stamp(1, [0])
    for d in range(8):
        A(f"v_lshlrev_b32 v{U+2*d}, 16, v{XA+d}\nv_and_b32 v{U+2*d+1}, s51, v{XA+d}")
    def allred32(r, t):
        for n_ in (8, 4, 2, 1): A(f"v_add_f32_dpp v{r}, v{r}, v{r} row_ror:{n_} row_mask:0xf bank_mask:0xf")
        A(f"v_mov_b32 v{t}, v{r}\nv_permlane16_swap_b32 v{r}, v{t}\nv_add_f32 v{r}, v{r}, v{t}")
    for d in range(4): A(f"v_pk_add_f32 {vr(XA+2*d,2)}, {vr(U+4*d,2)}, {vr(U+4*d+2,2)}")
    A(f"v_pk_add_f32 {vr(XA,2)}, {vr(XA,2)}, {vr(XA+2,2)}\nv_pk_add_f32 {vr(XA+4,2)}, {vr(XA+4,2)}, {vr(XA+6,2)}")
    A(f"v_pk_add_f32 {vr(XA,2)}, {vr(XA,2)}, {vr(XA+4,2)}\nv_add_f32 v24, v{XA}, v{XA+1}")
    allred32(24, 25)
    A("v_mul_f32 v24, 0x3b000000, v24")
    for d in range(16): A(f"v_sub_f32 v{U+d}, v{U+d}, v24")
    A(f"v_mul_f32 v26, v{U}, v{U}\nv_mul_f32 v27, v{U+1}, v{U+1}")
    for d in range(2, 16): A(f"v_fmac_f32 v{26+(d&1)}, v{U+d}, v{U+d}")
    A("v_add_f32 v26, v26, v27")
    allred32(26, 25)
    A("v_mul_f32 v26, 0x3b000000, v26")
    A("v_cvt_pk_bf16_f32 v24, v24, v26\nv_and_b32 v26, s51, v24\nv_lshlrev_b32 v24, 16, v24")
    A("v_add_f32 v26, 0x3727c5ac, v26\nv_cvt_pk_bf16_f32 v26, v26, v26\nv_and_b32 v26, s51, v26")
    A("v_sqrt_f32 v26, v26\nv_cvt_pk_bf16_f32 v26, v26, v26\nv_and_b32 v26, s51, v26\nv_rcp_f32 v26, v26")
    A("v_readlane_b32 s60, v24, 0\nv_readlane_b32 s62, v24, 32\nv_readlane_b32 s61, v26, 0\nv_readlane_b32 s63, v26, 32")
    A("s_cmp_eq_u32 s33, 0\ns_cselect_b32 s54, s60, s62\ns_cselect_b32 s55, s61, s63")
    A("v_mov_b32 v30, s54\nv_mov_b32 v31, s55")
    def normalize(src, dst):
        for d in range(4): A(f"v_lshlrev_b32 v{U+2*d}, 16, v{src+d}\nv_and_b32 v{U+2*d+1}, s51, v{src+d}")
        for d in range(8): A(f"v_sub_f32 v{U+d}, v{U+d}, v30")
        for d in range(4): A(f"v_cvt_pk_bf16_f32 v{dst+d}, v{U+2*d}, v{U+2*d+1}")
        for d in range(4): A(f"v_lshlrev_b32 v{U+2*d}, 16, v{dst+d}\nv_and_b32 v{U+2*d+1}, s51, v{dst+d}")
        for d in range(8): A(f"v_mul_f32 v{U+d}, v{U+d}, v31")
        for d in range(4): A(f"v_cvt_pk_bf16_f32 v{dst+d}, v{U+2*d}, v{U+2*d+1}")
    def permtile(src, dst):
        for d in range(4):
            for t in range(4):
                A(f"v_perm_b32 v{dst+4*(2*d)+t}, v{src+4*(2*t+1)+d}, v{src+4*(2*t)+d}, s49")
            for t in range(4):
                A(f"v_perm_b32 v{dst+4*(2*d+1)+t}, v{src+4*(2*t+1)+d}, v{src+4*(2*t)+d}, s50")
    def mfmatile(acc, a, w, zero):
        for e in range(8):
            A(f"v_mfma_f32_16x16x32_bf16 {vr(acc+4*e,4)}, {vr(a,4)}, {vr(w+4*e,4)}, {'0' if zero else vr(acc+4*e,4)}")
    def row0_write(addr, acc, r, off):
        for e in range(0, 8, 2):
            A(f"ds_write2_b32 v{addr}, v{acc+4*e+r}, v{acc+4*(e+1)+r} offset0:{off//4+e} offset1:{off//4+e+1}")
    def poll(name, loads, sleep=0, masks=None):
        A(f"s_mov_b32 s58, {spin}")
        for i in range(len(loads)):
            m = masks[i] if masks else -1
            if m == -1: A(f"s_mov_b64 s[{80+2*i}:{81+2*i}], -1")
            else: A(f"s_mov_b32 s{80+2*i}, {hex(m & 0xffffffff)}\ns_mov_b32 s{81+2*i}, {hex(m >> 32)}")
        A(f"L_{name}:")
        for i, (l_, r) in enumerate(loads):
            A(f"s_mov_b64 exec, s[{80+2*i}:{81+2*i}]")
            if len(loads) > 1:
                A(f"s_cbranch_execz L_{name}s{i}"); A.counted = False; A(l_); A.counted = True; A(f"L_{name}s{i}:")
            else: A(l_)
        A("s_waitcnt vmcnt(0)")
        for i, (l_, r) in enumerate(loads):
            if len(loads) > 1: A(f"s_mov_b64 exec, s[{80+2*i}:{81+2*i}]")
            A(f"v_cmp_ne_u32 s[{80+2*i}:{81+2*i}], {TAG}, v{r}")
        A("s_mov_b64 exec, -1")
        if len(loads) == 1: A("s_or_b64 vcc, s[80:81], s[80:81]")
        else:
            A("s_or_b64 vcc, s[80:81], s[82:83]")
            for i in range(2, len(loads)): A(f"s_or_b64 vcc, vcc, s[{80+2*i}:{81+2*i}]")
        A(f"s_cbranch_scc0 L_{name}d")
        if sleep: A(f"s_sleep {sleep}")
        A(f"s_sub_u32 s58, s58, 1\ns_cbranch_scc0 L_{name}")
        A(f"L_{name}d:")
    def trickle(loads):
        n_ = 0
        for l_ in loads:
            if l_.startswith(("buffer_load", "global_load")):
                if n_ and n_ % trk == 0: A("s_waitcnt vmcnt(0)")
                n_ += 1
            A(l_)
    A("s_waitcnt vmcnt(8)")
    normalize(XB, AO)
    A("s_waitcnt vmcnt(0)")
    stamp(2, [0]); stamp(1, [1])
    permtile(WQ, T)
    mfmatile(D, AO, T, True)
    def xrow(regs, t):
        for i, r in enumerate(regs): A(f"v_mov_b32 v{t+i}, v{r}")
        for i, r in enumerate(regs): A(f"v_permlane32_swap_b32 v{r}, v{t+i}")
        for i, r in enumerate(regs): A(f"v_add_f32 v{r}, v{r}, v{t+i}")
        for i, r in enumerate(regs): A(f"v_mov_b32 v{t+i}, v{r}")
        for i, r in enumerate(regs): A(f"v_permlane16_swap_b32 v{r}, v{t+i}")
        for i, r in enumerate(regs): A(f"v_add_f32 v{r}, v{r}, v{t+i}")
    A("v_mov_b32 v24, 0\nv_mov_b32 v25, 1")
    A("s_lshl_b32 s54, s35, 13\ns_lshl_b32 s55, s56, 12\ns_add_u32 s55, s55, s54\ns_lshl_b32 s57, s57, 9\ns_add_u32 s55, s55, s57\nv_lshl_add_u32 v26, v1, 4, s55")
    A("s_lshl_b32 s55, s4, 10\ns_add_u32 s55, s55, s54\ns_add_u32 s55, s55, 0x1000\nv_lshl_add_u32 v4, v1, 4, s55")
    A("s_mov_b32 exec_lo, 0xff\ns_mov_b32 exec_hi, 0xff00")
    row0_write(29, D, 0, 0)
    A("s_mov_b64 exec, 1")
    A("s_waitcnt lgkmcnt(0)")
    A(f"ds_add_rtn_u32 v27, v24, v25 offset:{L_CNT}")
    A(f"s_add_u32 {TAG}, s47, 0x9e3779b9")
    A("s_waitcnt lgkmcnt(0)")
    stamp(2, [1]); stamp(3, [1])
    A("v_readfirstlane_b32 s54, v27\ns_mov_b64 exec, -1\ns_cmp_eq_u32 s54, 3\ns_cbranch_scc0 L_qwait")
    for i in range(4): A(f"ds_read_b64 {vr(XA+2*i,2)}, v28 offset:{L_YR+512*i}")
    A("s_waitcnt lgkmcnt(0)")
    A(f"v_pk_add_f32 {vr(XA,2)}, {vr(XA,2)}, {vr(XA+2,2)}\nv_pk_add_f32 {vr(XA+4,2)}, {vr(XA+4,2)}, {vr(XA+6,2)}\nv_pk_add_f32 {vr(XA,2)}, {vr(XA,2)}, {vr(XA+4,2)}")
    A(f"v_mov_b32 v{XA+4}, v{XA}\nv_mov_b32 v{XA+5}, v{XA+1}\nv_mov_b32 v{XA+2}, {TAG}\nv_permlane32_swap_b32 v{XA}, v{XA+4}\nv_permlane32_swap_b32 v{XA+1}, v{XA+5}")
    A(f"v_pk_add_f32 {vr(XA,2)}, {vr(XA,2)}, {vr(XA+4,2)}")
    A(f"s_mov_b32 exec_hi, 0\nglobal_store_dwordx4 v26, {vr(XA,4)}, s[30:31] sc1\ns_mov_b32 exec_hi, -1")
    A(f"s_mov_b64 exec, 1\nds_add_u32 v24, v25 offset:{L_CNT}\ns_mov_b64 exec, -1")
    stamp(3, [1])
    A("s_branch L_qpub")
    def ldswait(name, off, val, sleep):
        A(f"s_mov_b32 s58, {spin}\nv_mov_b32 v24, 0")
        A(f"L_{name}:")
        A(f"ds_read_b32 v27, v24 offset:{off}\ns_waitcnt lgkmcnt(0)\nv_cmp_gt_u32 vcc, {val}, v27\ns_cbranch_vccz L_{name}d")
        A(f"s_sleep {sleep}\ns_sub_u32 s58, s58, 1\ns_cbranch_scc0 L_{name}")
        A(f"L_{name}d:")
    A("L_qwait:")
    ldswait("wq", L_CNT, 5, 1)
    A("L_qpub:")
    if 'O' not in exp:
        for s in range(4):
            A(f"buffer_load_dwordx4 {vr(WO+4*s,4)}, v7, s[40:43], s45 offen {PW}")
            A(f"buffer_load_dwordx4 {vr(WO+4*(s+4),4)}, v7, s[40:43], s45 offen offset:1024 {PW}")
            if s < 3: A("s_add_u32 s45, s45, 0x2000")
    def ffnloads():
        A("s_cmp_eq_u32 s94, 0\ns_cbranch_scc1 L_nof")
        A(f"global_load_dwordx4 {vr(XB,4)}, v{WT+1}, s[8:9]")
        for s in range(8):
            A(f"buffer_load_dwordx4 {vr(UP+4*s,4)}, v{WT}, s[88:91], s92 offen {PW}")
            if s < 7: A("s_add_u32 s92, s92, s93")
        A("L_nof:")
    if 'e' in exp: ffnloads()
    if q0sleep: A(f"s_sleep {q0sleep}")
    if 'w' in exp: A("s_waitcnt vmcnt(0)")
    if 'Q' not in exp: poll("pq", [(f"global_load_dwordx4 {vr(WQ+4*i,4)}, v4, s[30:31] offset:{-4096 if i == 0 else 0} sc1", WQ + 4 * i + 2) for i in range(2)], qsleep)
    else: A("s_waitcnt vmcnt(0)")
    stamp(4, [1])
    A(f"s_lshl_b32 s54, s4, 8\nv_lshl_add_u32 v4, v1, 2, s54\nv_pk_add_f32 {vr(WQ,2)}, {vr(WQ,2)}, {vr(WQ+4,2)}\nv_cvt_pk_bf16_f32 v{WQ}, v{WQ}, v{WQ+1}")
    A(f"ds_write_b32 v4, v{WQ} offset:{L_Q}")
    A("s_waitcnt lgkmcnt(0)")
    stamp(5, [1])
    A("s_barrier")
    stamp(3, [0]); stamp(1, [2])
    if 'e' not in exp: ffnloads()
    permtile(WO, WT)
    A("s_waitcnt vmcnt(0)")
    A("v_and_b32 v4, 1, v1\ns_cmp_eq_u32 s94, 0\ns_cbranch_scc1 L_w1\ns_cmp_eq_u32 s94, 2\ns_cbranch_scc1 L_down")
    A("v_cmp_eq_u32 vcc, 1, v4\nv_mov_b32 v30, s60\nv_mov_b32 v31, s62\nv_mov_b32 v5, s61\nv_mov_b32 v6, s63")
    A("v_cndmask_b32 v30, v30, v31, vcc\nv_cndmask_b32 v31, v5, v6, vcc")
    normalize(XB, AO)
    A("s_branch L_ftile")
    A("L_down:")
    ldswait("wd", L_PRG, 48, 8)
    A(f"s_lshr_b32 s54, s95, 2\ns_lshl_b32 s54, s54, 14\ns_lshl_b32 s55, s4, 9\ns_add_u32 s54, s54, s55\ns_add_u32 s54, s54, {WS_G1+4096}")
    A("v_lshrrev_b32 v5, 5, v1\nv_lshlrev_b32 v5, 13, v5\nv_and_b32 v6, 31, v1\nv_lshl_add_u32 v5, v6, 4, v5\nv_add_u32 v5, s54, v5")
    if 'G' not in exp: poll("pg", [(f"global_load_dwordx4 {vr(D+4*i,4)}, v5, s[30:31] offset:{2048*i-4096} sc1", D + 4 * i + 2) for i in range(4)], 32)
    A(f"v_pk_add_f32 {vr(D,2)}, {vr(D,2)}, {vr(D+4,2)}\nv_pk_add_f32 {vr(D+8,2)}, {vr(D+8,2)}, {vr(D+12,2)}\nv_pk_add_f32 {vr(D,2)}, {vr(D,2)}, {vr(D+8,2)}")
    A(f"v_permlane32_swap_b32 v{D}, v{D+1}\nv_cvt_pk_bf16_f32 v24, v{D}, v{D+1}\nv_lshlrev_b32 v25, 16, v24\nv_and_b32 v24, s51, v24")
    A("v_max_f32 v25, 0, v25\nv_mul_f32 v24, v24, v25\nv_cvt_pk_bf16_f32 v24, v24, v24")
    A(f"s_lshl_b32 s54, s4, 7\ns_add_u32 s54, s54, {L_TP}\nv_lshl_add_u32 v5, v1, 1, s54\nv_lshl_add_u32 v6, v4, 6, s54\nv_lshl_add_u32 v6, v2, 4, v6")
    A(f"ds_write_b16 v5, v24\ns_waitcnt lgkmcnt(0)\nds_read_b128 {vr(AO,4)}, v6\ns_waitcnt lgkmcnt(0)")
    A("L_ftile:")
    permtile(UP, T); mfmatile(D, AO, T, True)
    A(f"v_add_u32 v5, {L_FP-L_YR}, v29\nv_add_u32 v6, {L_FP-L_YR+2048}, v29\nv_mov_b32 v24, 0\nv_mov_b32 v25, 1")
    A("s_mov_b64 exec, 0xffff")
    row0_write(5, D, 0, 0); row0_write(6, D, 1, 0)
    A("s_mov_b64 exec, 1\ns_waitcnt lgkmcnt(0)")
    A(f"ds_add_rtn_u32 v27, v24, v25 offset:{L_CNT+4}\ns_waitcnt lgkmcnt(0)")
    A("v_readfirstlane_b32 s54, v27\ns_mov_b64 exec, -1\ns_cmp_eq_u32 s54, 3\ns_cbranch_scc0 L_w1")
    A(f"v_lshlrev_b32 v5, 2, v1\nv_add_u32 v5, {L_FP}, v5")
    for hf in range(2):
        for i in range(4): A(f"ds_read2st64_b32 {vr(WQ+8*hf+2*i,2)}, v5 offset0:{2*i+hf} offset1:{8+2*i+hf}")
    A("v_lshl_add_u32 v5, v1, 4, s59\ns_waitcnt lgkmcnt(0)")
    for hf in range(2):
        r = WQ + 8 * hf
        A(f"v_pk_add_f32 {vr(r,2)}, {vr(r,2)}, {vr(r+2,2)}\nv_pk_add_f32 {vr(r+4,2)}, {vr(r+4,2)}, {vr(r+6,2)}\nv_pk_add_f32 {vr(r,2)}, {vr(r,2)}, {vr(r+4,2)}\nv_mov_b32 v{r+2}, {TAG}")
    if 'S' not in exp: A(f"global_store_dwordx4 v5, {vr(WQ,4)}, s[30:31] sc1\nglobal_store_dwordx4 v5, {vr(WQ+8,4)}, s[30:31] offset:1024 sc1")
    def rbf(r): A(f"v_cvt_pk_bf16_f32 v{r}, v{r}, v{r}\nv_and_b32 v{r}, s51, v{r}")
    G, XV, OA, H2A = 224, 225, 226, 227
    A("L_w1:")
    if ctl:
        A("s_cmp_eq_u32 s4, 3\ns_cbranch_scc0 L_noctl")
        A("s_lshr_b32 s54, s2, 5\ns_lshl_b32 s54, s54, 3\ns_add_u32 s57, s54, s32")
        A(f"s_mul_i32 s56, s57, {ctl_int}\ns_lshr_b32 s56, s56, 6\ns_add_u32 s56, s56, {ctl_t0}")
        A("s_bfe_u32 s55, s2, 0x20003\ns_lshl_b32 s55, s55, 6")
        A("L_ctl:")
        ldswait("wc", L_PRG, "s56", 2)
        A("s_mov_b32 s54, 1\ns_atomic_add s54, s[28:29], s55 glc\ns_waitcnt lgkmcnt(0)")
        A("s_sub_i32 s54, s57, s54")
        A(f"s_cmp_gt_i32 s54, {ctl_d[0]}\ns_cselect_b32 s48, 1, 0")
        if len(ctl_d) > 1: A(f"s_cmp_gt_i32 s54, {ctl_d[1]}\ns_cselect_b32 s48, 2, s48")
        A(f"v_mov_b32 v27, s48\nds_write_b32 v24, v27 offset:{L_MODE}")
        A(f"s_add_u32 s57, s57, 64\ns_add_u32 s56, s56, {ctl_int}\ns_cmp_le_u32 s56, 424\ns_cbranch_scc1 L_ctl")
        A("L_noctl:")
    A("s_cmp_eq_u32 s4, 1\ns_cbranch_scc0 L_tail\ns_cmp_lt_u32 s2, 128\ns_cbranch_scc0 L_tail")
    A("s_lshr_b32 s56, s2, 6\ns_and_b32 s57, s2, 63")
    A("v_and_b32 v4, 3, v1\nv_lshrrev_b32 v5, 2, v1\nv_lshlrev_b32 v5, 12, v5\nv_lshl_add_u32 v5, v4, 4, v5")
    A(f"s_lshl_b32 s54, s57, 6\ns_lshl_b32 s55, s56, 17\ns_add_u32 s55, s55, s54\ns_add_u32 s55, s55, {WS_H2}\nv_add_u32 v{H2A}, s55, v5\nv_add_u32 v{H2A+1}, 0x10000, v{H2A}")
    A("v_lshrrev_b32 v6, 5, v1\nv_lshl_add_u32 v6, v4, 1, v6")
    A(f"s_lshl_b32 s54, s2, 4\nv_lshl_add_u32 v{OA}, v6, 1, s54\nv_lshlrev_b32 v6, 2, v6")
    A(f"global_load_ushort v{XV}, v{OA}, s[8:9]")
    A(f"s_lshl_b32 s54, s57, 7\ns_add_u32 s54, s54, {WS_F}\nv_lshrrev_b32 v5, 3, v1\nv_lshlrev_b32 v5, 13, v5\nv_and_b32 v7, 7, v1\nv_lshl_add_u32 v5, v7, 4, v5\nv_add_u32 v5, s54, v5\nv_add_u32 v7, 0x10000, v5")
    A(f"v_mov_b32 v20, 0\nv_mov_b32 v21, 0")
    if noffn or 'F' in exp: A("s_branch L_tail")
    ldswait("wf", L_PRG, 160, 16)
    poll("pf", [("global_load_dwordx4 v[16:19], v5, s[30:31] sc1", 18), ("global_load_dwordx4 v[20:23], v7, s[30:31] sc1", 22)], 64, [-1, (1 << 48) - 1])
    A("v_pk_add_f32 v[16:17], v[16:17], v[20:21]")
    A("s_cmp_eq_u32 s56, 0\ns_cselect_b64 vcc, 0, -1\nv_cndmask_b32 v8, v16, v17, vcc")
    A("v_add_f32_dpp v8, v8, v8 row_ror:8 row_mask:0xf bank_mask:0xf")
    xrow([8], 9)
    rbf(8)
    A(f"v_mul_f32 v9, s53, v8\nv_exp_f32 v9, -v9\nv_add_f32 v9, 1.0, v9\nv_rcp_f32 v9, v9\nv_mul_f32 v8, v8, v9")
    rbf(8)
    A(f"ds_bpermute_b32 v{G}, v6, v8\nv_lshlrev_b32 v{XV}, 16, v{XV}")
    A("L_tail:")
    A(f"s_lshl_b32 s54, s4, 9\nv_add_u32 v4, s54, v28\ns_lshl_b32 s55, s4, 5\nv_mov_b32 v5, s55")
    A(f"s_lshl_b32 s56, s35, 16\ns_add_u32 s56, s56, {WS_H1}\ns_lshl_b32 s57, s4, 14\ns_add_u32 s57, s57, s56\ns_lshl_b32 s58, s34, 8\ns_add_u32 s57, s57, s58")
    A("v_lshlrev_b32 v6, 12, v2\nv_lshl_add_u32 v6, v3, 4, v6\nv_add_u32 v6, s57, v6")
    A("s_lshl_b32 s58, s7, 12\ns_add_u32 s56, s56, s58\nv_lshl_add_u32 v26, v1, 4, s56\nv_lshl_add_u32 v27, v1, 8, s56")
    A(f"s_lshl_b32 s56, s35, 2\ns_add_u32 s56, s56, s5\ns_lshl_b32 s56, s56, 12\ns_lshl_b32 s57, s6, 10\ns_add_u32 s56, s56, s57\ns_add_u32 s56, s56, {WS_H2}\nv_lshl_add_u32 v25, v1, 4, s56")
    A(f"v_mov_b32 v50, {TAG}")
    A("s_waitcnt vmcnt(0) lgkmcnt(0)")
    stamp(2, [2])
    A("s_barrier")
    stamp(4, [0]); stamp(3, [2])
    A(f"ds_read_b128 v[40:43], v5 offset:{L_ML}\nds_read_b128 v[44:47], v5 offset:{L_ML+16}")
    for i in range(4): A(f"ds_read_b64 {vr(32+2*i,2)}, v4 offset:{L_OP+2048*i}")
    A("s_waitcnt lgkmcnt(0)" if stamps else "s_waitcnt lgkmcnt(4)")
    A("v_max3_f32 v51, v40, v42, v44\nv_max_f32 v51, v51, v46")
    for i in range(4): A(f"v_sub_f32 v{40+2*i}, v{40+2*i}, v51")
    for i in range(4): A(f"v_exp_f32 v{40+2*i}, v{40+2*i}")
    A("v_mul_f32 v41, v40, v41")
    for i in range(1, 4): A(f"v_fmac_f32 v41, v{40+2*i}, v{41+2*i}")
    A("v_rcp_f32 v52, v41\nv_log_f32 v53, v41")
    A("s_waitcnt lgkmcnt(0)")
    A("v_pk_mul_f32 v[48:49], v[32:33], v[40:41] op_sel_hi:[1,0]")
    for i in range(1, 4): A(f"v_pk_fma_f32 v[48:49], {vr(32+2*i,2)}, {vr(40+2*i,2)}, v[48:49] op_sel_hi:[1,0,1]")
    A("v_add_f32 v51, v51, v53\nv_pk_mul_f32 v[48:49], v[48:49], v[52:53] op_sel_hi:[1,0]")
    A("global_store_dwordx4 v6, v[48:51], s[30:31] sc1")
    if lim >= 0:
        A("s_cmp_eq_u32 s4, 0\ns_cbranch_scc0 L_lpd")
        A(f"s_mov_b32 s58, {spin}\ns_mov_b64 exec, 0xffff")
        A("L_lp:")
        A(f"global_load_dword v12, v27, s[30:31] offset:8 sc1\ns_waitcnt vmcnt(0)\nv_cmp_ne_u32 vcc, {TAG}, v12\ns_mov_b64 exec, vcc\ns_bcnt1_i32_b64 s54, vcc")
        A(f"s_cmp_le_u32 s54, {lim}\ns_cbranch_scc1 L_lpe\ns_sub_u32 s58, s58, 1\ns_cbranch_scc0 L_lp")
        A("L_lpe:\ns_mov_b64 exec, -1\nL_lpd:\ns_barrier")
    poll("p1", [(f"global_load_dwordx4 {vr(64+4*i,4)}, v26, s[30:31] offset:{1024*i} sc1", 64 + 4 * i + 2) for i in range(4)], psleep)
    stamp(5, [0]); stamp(4, [2])
    A("v_max3_f32 v62, v67, v71, v75\nv_max_f32 v62, v62, v79")
    A("v_mov_b32 v63, v62\nv_permlane32_swap_b32 v62, v63\nv_max_f32 v62, v62, v63\nv_mov_b32 v63, v62\nv_permlane16_swap_b32 v62, v63\nv_max_f32 v62, v62, v63")
    for i in range(4): A(f"v_sub_f32 v{66+4*i}, v{67+4*i}, v62")
    for i in range(4): A(f"v_exp_f32 v{66+4*i}, v{66+4*i}")
    A("v_pk_mul_f32 v[52:53], v[64:65], v[66:67] op_sel_hi:[1,0]\nv_add_f32 v54, v66, v70")
    for i in range(1, 4): A(f"v_pk_fma_f32 v[52:53], {vr(64+4*i,2)}, {vr(66+4*i,2)}, v[52:53] op_sel_hi:[1,0,1]")
    A("v_add_f32 v55, v74, v78\nv_add_f32 v54, v54, v55")
    xrow([54, 52, 53], 56)
    A("v_rcp_f32 v54, v54\nv_pk_mul_f32 v[52:53], v[52:53], v[54:55] op_sel_hi:[1,0]\nv_cvt_pk_bf16_f32 v52, v52, v53")
    for g in range(4):
        for t in range(4): A(f"v_mov_b32_dpp v{AO+t}, v52 row_newbcast:{4*g+t} row_mask:{hex(1<<g)} bank_mask:0xf")
    mfmatile(D, AO, WT, True)
    A("s_mov_b64 exec, 0xffff")
    row0_write(29, D, 0, 0)
    A("s_mov_b64 exec, -1\ns_waitcnt lgkmcnt(0)")
    A("s_barrier")
    stamp(5, [2])
    A("s_cmp_eq_u32 s4, 0\ns_cbranch_scc0 L_fin")
    for i in range(4): A(f"ds_read_b64 {vr(XA+2*i,2)}, v28 offset:{L_YR+512*i}")
    A("s_waitcnt lgkmcnt(0)")
    A(f"v_pk_add_f32 {vr(XA,2)}, {vr(XA,2)}, {vr(XA+2,2)}\nv_pk_add_f32 {vr(XA+4,2)}, {vr(XA+4,2)}, {vr(XA+6,2)}\nv_mov_b32 v{XA+2}, {TAG}\nv_pk_add_f32 {vr(XA,2)}, {vr(XA,2)}, {vr(XA+4,2)}")
    A(f"global_store_dwordx4 v25, {vr(XA,4)}, s[30:31] sc1")
    A("s_branch L_end")
    A("L_fin:")
    A("s_cmp_eq_u32 s4, 1\ns_cbranch_scc0 L_bump\ns_cmp_lt_u32 s2, 128\ns_cbranch_scc0 L_end")
    poll("p2", [(f"global_load_dwordx4 v[16:19], v{H2A}, s[30:31] sc1", 18), (f"global_load_dwordx4 v[20:23], v{H2A+1}, s[30:31] sc1", 22)], psleep)
    A("v_pk_add_f32 v[16:17], v[16:17], v[20:21]\nv_permlane32_swap_b32 v16, v17\nv_add_f32 v8, v16, v17")
    A("v_mov_b32 v9, v8\nv_permlane16_swap_b32 v8, v9\nv_add_f32 v8, v8, v9")
    for n_ in (4, 8): A(f"v_add_f32_dpp v8, v8, v8 row_ror:{n_} row_mask:0xf bank_mask:0xf")
    rbf(8)
    A(f"v_mul_f32 v8, v8, v{G}"); rbf(8)
    A(f"v_add_f32 v8, v8, v{XV}\nv_cvt_pk_bf16_f32 v8, v8, v8")
    A("s_mov_b32 exec_lo, 15\ns_mov_b32 exec_hi, 15")
    A(f"global_store_short v{OA}, v8, s[26:27]")
    A("s_branch L_end")
    A("L_bump:")
    A("s_cmp_eq_u32 s4, 2\ns_cbranch_scc0 L_end\ns_cmp_eq_u32 s2, 255\ns_cbranch_scc0 L_end")
    A(f"v_lshlrev_b32 v4, 14, v1\nv_add_u32 v4, {WS_H2}, v4")
    poll("p3", [("global_load_dwordx4 v[16:19], v4, s[30:31] sc1", 18)], 1, [0xffff])
    A(f"s_mov_b64 exec, 1\nv_mov_b32 v4, {WS_E}\nglobal_store_dword v4, v50, s[30:31] sc1")
    A("L_end:")
    if stamps:
        A("s_waitcnt vmcnt(0)")
        stamp(6)
        A("L_stamps:")
        A("s_getreg_b32 s78, hwreg(HW_REG_XCC_ID)\ns_mov_b32 s79, 0")
        A("s_waitcnt lgkmcnt(0)\ns_mov_b64 exec, 1\ns_lshl_b32 s54, s2, 3\ns_add_u32 s54, s54, s3\ns_lshl_b32 s54, s54, 6\ns_add_u32 s54, s54, 0x10000000\nv_mov_b32 v4, s54")
        for i in range(4):
            for k in range(4): A(f"v_mov_b32 v{8+k}, s{64+4*i+k}")
            A(f"global_store_dwordx4 v4, v[8:11], s[30:31] offset:{16*i}")
    A("L_exit:")
    A("s_endpgm")
    A.check_all_edges()
    out = HEADER
    out += f"; @launch grid=(256,1,1) block=(512,1,1) lds={L_SIZE}\n"
    out += f'.amdgcn_target "amdgcn-amd-amdhsa--gfx950"\n.text\n.globl {NAME}_kernel\n.p2align 8\n.type {NAME}_kernel,@function\n'
    out += A.text()
    out += f""".section .rodata,"a"
.p2align 6
.amdhsa_kernel {NAME}_kernel
  .amdhsa_next_free_vgpr 240
  .amdhsa_next_free_sgpr 100
  .amdhsa_accum_offset 240
  .amdhsa_group_segment_fixed_size 0
  .amdhsa_kernarg_size 96
  .amdhsa_user_sgpr_count 2
  .amdhsa_user_sgpr_kernarg_segment_ptr 1
  .amdhsa_system_sgpr_workgroup_id_x 1
  .amdhsa_float_denorm_mode_32 3
.end_amdhsa_kernel
"""
    return out

if __name__ == "__main__":
    ap = argparse.ArgumentParser()
    ap.add_argument("out"); ap.add_argument("--stamps", action="store_true"); ap.add_argument("--nomimic", action="store_true")
    ap.add_argument("--thr", type=int, default=4); ap.add_argument("--sset", type=int, default=0); ap.add_argument("--qsleep", type=int, default=0); ap.add_argument("--psleep", type=int, default=0); ap.add_argument("--noffn", action="store_true"); ap.add_argument("--R", type=int, default=16); ap.add_argument("--rot", type=int, default=2); ap.add_argument("--trk", type=int, default=2); ap.add_argument("--q0sleep", type=int, default=0); ap.add_argument("--exp", default=""); ap.add_argument("--RV", type=int, default=4); ap.add_argument("--lim", type=int, default=2); ap.add_argument("--ctl", default=""); ap.add_argument("--pol", default="ndd")
    a = ap.parse_args()
    ck = {}
    if a.ctl:
        p = a.ctl.split("/")
        ck = dict(ctl=True, ctl_thr=[int(x) for x in p[0].split(",")], ctl_d=[int(x) for x in p[1].split(",")], ctl_int=int(p[2]), ctl_t0=int(p[3]))
    open(a.out, "w").write(gen(stamps=a.stamps, mimic=not a.nomimic, thr=a.thr, sset=a.sset, qsleep=a.qsleep, psleep=a.psleep, noffn=a.noffn, R=a.R, rot=a.rot, trk=a.trk, q0sleep=a.q0sleep, exp=a.exp, RV=a.RV, lim=a.lim, pol=a.pol, **ck))
```

```python
import sys, argparse
from asmlib import Asm
NAME = "recurrent_scan__gqa_block_cached__glu_gated_reglu__decode"

HEADER = open("cdna_kernels/" + NAME + ".s.ref").read().split("; Override launch")[0]

WS_QP = 0x0
WS_G1 = 0x90000
WS_F = 0x20000
WS_H2 = 0x40000
WS_E = 0x80000
WS_H1 = 0x100000
L_PRG = 0; L_CNT = 1408; L_MODE = 1416; L_Q = 256; L_ML = 1280; L_TP = 1536; L_YR = 2048; L_OP = 4096; L_FP = 12288; L_SC = 16384; L_SIZE = 32768

def gen(stamps=False, mimic=True, thr=4, spin=1 << 16, sset=0, qsleep=0, psleep=0, noffn=False, R=16, rot=2, trk=2, q0sleep=0, exp='', RV=4, lim=2, ctl=False, ctl_thr=(3, 2), ctl_d=(8, 24), ctl_int=32, ctl_t0=80, pol='nnn', leak=''):
    PK, PV, PW = [{'n': 'nt', 'd': ''}[c] for c in pol]
    A = Asm()
    nst = [0]
    def stamp(i, sets=None):
        if stamps and (sets is None or sset in sets): A(f"s_memrealtime s[{64+2*i}:{65+2*i}]")
    def vr(a, n): return f"v[{a}:{a+n-1}]"
    lab = [0]
    def newlab(p):
        lab[0] += 1; return f"L_{p}{lab[0]}"

    A(f"{NAME}_kernel:")
    stamp(0)
    A("s_cmp_ge_u32 s2, 256\ns_cbranch_scc1 L_exit")
    A("s_load_dwordx16 s[8:23], s[0:1], 0\ns_load_dwordx8 s[24:31], s[0:1], 64")
    A("v_lshrrev_b32 v4, 6, v0\nv_and_b32 v1, 63, v0\nv_mov_b32 v6, 0\nv_readfirstlane_b32 s3, v4\nv_mov_b32 v7, 0")
    A(f"ds_write_b64 v6, v[6:7] offset:{L_CNT}\nds_write_b64 v6, v[6:7] offset:{L_MODE}")
    A("ds_write_b64 v6, v[6:7]")
    A("s_and_b32 s32, s2, 7\ns_bfe_u32 s33, s2, 0x10003\ns_lshr_b32 s34, s2, 4\ns_lshl_b32 s35, s33, 3\ns_add_u32 s35, s35, s32")
    A("v_lshrrev_b32 v2, 4, v1\nv_and_b32 v3, 15, v1")
    A("s_mov_b32 s49, 0x05040100\ns_mov_b32 s50, 0x07060302\ns_mov_b32 s51, 0xffff0000\ns_mov_b32 s53, 0x3fb8aa3b")
    A("s_mov_b32 s39, 0x20000\ns_mov_b32 s43, 0x20000")
    A("s_cmp_ge_u32 s3, 4\ns_cbranch_scc1 L_aux")

    Q, P, M, Lr, S, TD, D, O, T, RING = 4, 8, 12, 13, 20, 28, 32, 48, 80, 112
    def RB(slot, u): return RING + 8 * slot + 4 * u
    A("s_lshl_b32 s54, s35, 4\ns_add_u32 s54, s54, s34")
    A(f"s_mul_i32 s44, s54, {rot * 8192}\ns_and_b32 s44, s44, 0x7ffff\ns_lshl_b32 s54, s54, 19")
    A("s_lshl_b32 s55, s3, 11")
    A("v_lshrrev_b32 v14, 2, v3\nv_lshlrev_b32 v14, 8, v14\nv_and_b32 v15, 3, v1\nv_lshlrev_b32 v15, 4, v15")
    A("v_lshl_add_u32 v14, v2, 6, v14\nv_add3_u32 v14, v14, v15, s55")
    A("s_mov_b32 s38, 0x80000")
    A("s_waitcnt lgkmcnt(0)")
    A("s_add_u32 s36, s10, s54\ns_addc_u32 s37, s11, 0\ns_and_b32 s37, s37, 0xffff")
    def issue(slot, pol=None):
        for u in range(2):
            A(f"buffer_load_dwordx4 {vr(RB(slot,u),4)}, v14, s[36:39], s44 offen offset:{u*1024} {PK if pol is None else pol}")
        A("s_add_u32 s44, s44, 0x2000\ns_and_b32 s44, s44, 0x7ffff")
        if prog: A(f"ds_add_u32 v0, v15 offset:{L_PRG}")
    def throttle():
        if not ctl:
            A(f"s_waitcnt vmcnt({thr})"); return
        l_ = newlab("th"); c_ = A.counted
        A(f"s_waitcnt vmcnt({thr})\ns_cmp_eq_u32 s45, 0\ns_cbranch_scc1 {l_}")
        A.counted = False
        if len(ctl_thr) > 1: A(f"s_waitcnt vmcnt({ctl_thr[0]})\ns_cmp_eq_u32 s45, 1\ns_cbranch_scc1 {l_}")
        A(f"s_waitcnt vmcnt({ctl_thr[-1]})")
        A(f"{l_}:"); A.counted = c_
    prog = False
    for n in range(R):
        if 2 * n > thr: A(f"s_waitcnt vmcnt({thr})")
        issue(n)
        if n == 2:
            A("s_barrier")
            A("s_add_u32 s40, s12, s54\ns_addc_u32 s41, s13, 0\ns_and_b32 s41, s41, 0xffff")
            for i in range(32): A(f"v_mov_b32 v{O+i}, 0")
            A(f"v_mov_b32 v{M}, 0xff7fffff\nv_mov_b32 v{Lr}, 0")
            A("v_and_b32 v16, 3, v1\nv_lshlrev_b32 v16, 8, v16\nv_lshrrev_b32 v17, 2, v1\nv_lshl_add_u32 v16, v17, 4, v16")
            A(f"s_lshl_b32 s56, s3, 12\ns_add_u32 s56, s56, {L_SC}\nv_lshl_add_u32 v19, v2, 6, v15\nv_add_u32 v19, s56, v19")
            A("s_mov_b32 s52, 0x3db504f3\ns_mov_b32 s48, 0\ns_mov_b32 s46, 0x000f000f\ns_mov_b32 s47, 0x000f000f")
    stamp(1)
    A("s_barrier")
    A(f"ds_read_b128 {vr(Q,4)}, v16 offset:{L_Q}")
    A("s_waitcnt lgkmcnt(0)")
    stamp(2)
    NIT = 64 // R
    def dpp(k):
        d0 = D + 8 * (k & 1); d1 = d0 + 4
        A(f"v_add_f32_dpp v{TD}, v{d0+3}, v{d0+2} row_shl:4 row_mask:0xf bank_mask:0xf bound_ctrl:0")
        A(f"v_add_f32_dpp v{TD+1}, v{d1+3}, v{d1+2} row_shl:4 row_mask:0xf bank_mask:0xf bound_ctrl:0")
        A(f"v_add_f32_dpp v{TD+2}, v{d0+1}, v{d0} row_shl:4 row_mask:0xf bank_mask:0xf bound_ctrl:0")
        A(f"v_add_f32_dpp v{TD+3}, v{d1+1}, v{d1} row_shl:4 row_mask:0xf bank_mask:0xf bound_ctrl:0")
    def fin(k):
        A(f"v_add_f32_dpp v{S}, v{TD}, v{TD+2} row_shl:8 row_mask:0xf bank_mask:0xf bound_ctrl:0")
        A(f"v_add_f32_dpp v{S+1}, v{TD+1}, v{TD+3} row_shl:8 row_mask:0xf bank_mask:0xf bound_ctrl:0")
        A(f"v_cvt_pk_bf16_f32 v16, v{S}, v{S+1}\nv_lshlrev_b32 v{S}, 16, v16\nv_and_b32 v{S+1}, s51, v16")
        A(f"v_mul_f32 v{S}, s52, v{S}\nv_mul_f32 v{S+1}, s52, v{S+1}")
        A(f"v_cvt_pk_bf16_f32 v{P+(k&3)}, v{S}, v{S+1}\nv_max3_f32 v{M}, v{M}, v{S}, v{S+1}")
        if k & 3 == 3:
            A(f"s_mov_b64 exec, s[46:47]\nds_write_b128 v19, {vr(P,4)} offset:{256*(k>>2)}\ns_mov_b64 exec, -1")
    ST = R // RV
    A("s_mov_b64 vcc, 0\nv_mov_b32 v17, 0\nv_mov_b32 v15, 1\ns_mov_b32 s45, 0\nv_lshlrev_b32 v0, 2, v1")
    prog = True
    A("L_kloop:")
    for k in range(R):
        d0 = D + 8 * (k & 1)
        if k > 0: dpp(k - 1)
        A(f"v_mfma_f32_16x16x32_bf16 {vr(d0,4)}, {vr(RB(k,0),4)}, {vr(Q,4)}, 0")
        A(f"v_mfma_f32_16x16x32_bf16 {vr(d0+4,4)}, {vr(RB(k,1),4)}, {vr(Q,4)}, 0")
        if k % ST != ST - 1:
            l1 = newlab("ks"); A(f"s_cbranch_vccnz {l1}"); A.counted = False
        throttle()
        issue(k)
        if k % ST != ST - 1:
            A(f"{l1}:"); A.counted = True
        if ctl and k & 3 == 1: A(f"ds_read_b32 v18, v17 offset:{L_MODE}")
        if ctl and k & 3 == 2: A("s_waitcnt lgkmcnt(0)\nv_readfirstlane_b32 s45, v18")
        if k > 0: fin(k - 1)
    dpp(R - 1); fin(R - 1)
    A(f"s_add_u32 s48, s48, 1\nv_add_u32 v19, {64*R}, v19")
    A(f"s_cmp_lt_u32 s48, {NIT-1}\ns_cbranch_scc1 L_kloop")
    A(f"s_cmp_eq_u32 s48, {NIT-1}\ns_cbranch_scc0 L_kdone")
    A("s_mov_b32 s36, s40\ns_mov_b32 s37, s41\nv_lshl_add_u32 v14, v1, 4, s55\ns_mov_b64 vcc, -1\ns_branch L_kloop")
    A("L_kdone:")
    A(f"v_cvt_pk_bf16_f32 v{M}, v{M}, v{M}\nv_and_b32 v{M}, s51, v{M}\nv_add_u32 v19, -4096, v19")
    A(f"v_mov_b32 v18, v{M}\nv_permlane32_swap_b32 v{M}, v18\nv_max_f32 v{M}, v{M}, v18\nv_mov_b32 v18, v{M}\nv_permlane16_swap_b32 v{M}, v18\nv_max_f32 v{M}, v{M}, v18")
    for n_ in (4, 8, 12): A(f"v_mov_b32_dpp v{M}, v{M} row_shr:{n_} row_mask:0xf bank_mask:{hex(1 << (n_ // 4))}")
    A(f"v_mul_f32 v{M}, s53, v{M}")
    A("s_mov_b32 s48, 0\ns_mov_b64 vcc, 0\ns_waitcnt lgkmcnt(0)")
    stamp(5, [3])
    assert thr <= 2 * (RV - 2)
    def VP(k): return ST * k + ST - 1
    def perms(k):
        t = k & 3
        for d in range(4):
            A(f"v_perm_b32 v{T+4*(2*d)+t}, v{RB(VP(k),1)+d}, v{RB(VP(k),0)+d}, s49")
            A(f"v_perm_b32 v{T+4*(2*d+1)+t}, v{RB(VP(k),1)+d}, v{RB(VP(k),0)+d}, s50")
    nfl = (thr + 3) // 2
    def tail(k):
        rem = RV - 1 - (k + 1)
        lastwait = 2 * rem if (0 <= rem < nfl) else None
        l1 = newlab("sk")
        A(f"s_cbranch_vccnz {l1}")
        A.counted = False
        throttle()
        issue(VP(k), PV)
        if lastwait is not None:
            l2 = newlab("jn")
            A(f"s_branch {l2}\n{l1}:\ns_waitcnt vmcnt({lastwait})\n{l2}:")
        else:
            A(f"{l1}:")
        A.counted = True
    A("L_vloop:")
    for k in range(RV):
        t = k & 3
        if t == 0:
            A(f"ds_read_b128 {vr(TD,4)}, v19 offset:{256*(k>>2)}")
            if ctl: A(f"ds_read_b32 v18, v17 offset:{L_MODE}")
            perms(k)
        elif t == 1:
            perms(k)
            A("s_waitcnt lgkmcnt(0)")
            if ctl: A("v_readfirstlane_b32 s45, v18")
            for i in range(4): A(f"v_lshlrev_b32 v{S+2*i}, 16, v{TD+i}\nv_and_b32 v{S+2*i+1}, s51, v{TD+i}")
            for i in range(8): A(f"v_fma_f32 v{S+i}, v{S+i}, s53, -v{M}")
            for i in range(8): A(f"v_exp_f32 v{S+i}, v{S+i}")
        elif t == 2:
            perms(k)
            for i in range(4): A(f"v_cvt_pk_bf16_f32 v{P+i}, v{S+2*i}, v{S+2*i+1}")
            A(f"v_pk_add_f32 {vr(S,2)}, {vr(S,2)}, {vr(S+2,2)}\nv_pk_add_f32 {vr(S+4,2)}, {vr(S+4,2)}, {vr(S+6,2)}")
            A(f"v_pk_add_f32 {vr(S,2)}, {vr(S,2)}, {vr(S+4,2)}\nv_add_f32 v{Lr}, v{Lr}, v{S}\nv_add_f32 v{Lr}, v{Lr}, v{S+1}")
        else:
            perms(k)
            for e in range(8):
                A(f"v_mfma_f32_16x16x32_bf16 {vr(O+4*e,4)}, {vr(T+4*e,4)}, {vr(P,4)}, {vr(O+4*e,4)}")
        tail(k)
    A(f"v_add_u32 v19, {64*RV}, v19")
    A(f"s_add_u32 s48, s48, 1\ns_cmp_eq_u32 s48, {64//RV-1}\ns_cselect_b64 vcc, -1, 0\ns_cmp_lt_u32 s48, {64//RV}\ns_cbranch_scc1 L_vloop")
    stamp(3)
    A(f"v_mov_b32 v18, v{Lr}\nv_lshlrev_b32 v16, 9, v3\nv_lshl_add_u32 v16, v2, 7, v16\nv_permlane32_swap_b32 v{Lr}, v18\nv_add_f32 v{Lr}, v{Lr}, v18")
    A(f"v_mov_b32 v18, v{Lr}\nv_add_u32 v16, s55, v16\ns_lshl_b32 s56, s3, 3\nv_lshlrev_b32 v17, 5, v3\nv_permlane16_swap_b32 v{Lr}, v18\nv_add_f32 v{Lr}, v{Lr}, v18")
    A("v_add_u32 v17, s56, v17")
    A("s_mov_b32 exec_lo, 0x000f000f\ns_mov_b32 exec_hi, 0x000f000f")
    for e in range(8): A(f"ds_write_b128 v16, {vr(O+4*e,4)} offset:{L_OP+16*e}")
    A(f"ds_write_b64 v17, {vr(M,2)} offset:{L_ML}")
    A("s_waitcnt lgkmcnt(0)")
    A("s_barrier")
    if stamps:
        stamp(4); stamp(5, [0, 1, 2]); stamp(6); A("s_branch L_stamps")
    else:
        A("s_endpgm")

    XA, XB, AO, WQ, WO, T, D, WT, UP, U = 8, 16, 20, 32, 64, 96, 128, 160, 192, 224
    TAG = "s46"
    A("L_aux:")
    A("s_sub_u32 s4, s3, 4")
    A("s_lshr_b32 s5, s34, 2\ns_and_b32 s6, s34, 3")
    A("s_lshl_b32 s7, s5, 2\ns_add_u32 s7, s7, s4")
    A("v_lshlrev_b32 v4, 5, v1")
    A("v_lshrrev_b32 v24, 3, v3\nv_lshl_add_u32 v24, v24, 2, v2\nv_and_b32 v25, 7, v1")
    A("s_and_b32 s56, s34, 1\ns_lshl_b32 s57, s56, 2\ns_add_u32 s57, s57, s4")
    A("s_lshl_b32 s54, s33, 10\ns_lshl_b32 s55, s57, 7\ns_add_u32 s54, s54, s55\nv_lshl_add_u32 v5, v24, 4, s54")
    A("v_lshlrev_b32 v25, 4, v25\nv_lshl_add_u32 v6, v24, 16, v25\nv_lshlrev_b32 v7, 4, v3\nv_lshl_add_u32 v7, v2, 11, v7")
    A("s_lshl_b32 s44, s57, 19\ns_lshl_b32 s55, s32, 10\ns_add_u32 s44, s44, s55\ns_lshr_b32 s57, s34, 1\ns_lshl_b32 s55, s57, 7\ns_add_u32 s44, s44, s55")
    A("s_lshl_b32 s55, s6, 8\ns_lshl_b32 s45, s32, 4\ns_add_u32 s45, s45, s7\ns_lshl_b32 s45, s45, 15\ns_add_u32 s45, s45, s55")
    A("s_mov_b32 s38, 0x400000\ns_mov_b32 s42, 0x400000")
    A("s_waitcnt lgkmcnt(0)")
    A(f"global_load_dwordx4 {vr(XA,4)}, v4, s[8:9]\nglobal_load_dwordx4 {vr(XA+4,4)}, v4, s[8:9] offset:16\nglobal_load_dwordx4 {vr(XB,4)}, v5, s[8:9]")
    A("s_mov_b32 s36, s14\ns_and_b32 s37, s15, 0xffff\ns_mov_b32 s40, s16\ns_and_b32 s41, s17, 0xffff")
    for s in range(8):
        if 'W' not in exp: A(f"buffer_load_dwordx4 {vr(WQ+4*s,4)}, v6, s[36:39], s44 offen {PW}")
        if s < 7: A("s_add_u32 s44, s44, 0x2000")
    A(f"s_load_dword s47, s[30:31], {WS_E}")
    A("s_barrier")
    A(f"s_lshl_b32 s54, s4, 9\ns_add_u32 s54, s54, {L_YR}\nv_lshl_add_u32 v29, v3, 5, s54")
    A("v_lshlrev_b32 v28, 3, v1")
    A("s_lshr_b32 s95, s2, 1\ns_mov_b32 s90, 0x1c0000\ns_mov_b32 s91, 0x20000")
    A("s_bitcmp0_b32 s95, 2\ns_cselect_b32 s88, s20, s22\ns_cselect_b32 s89, s21, s23")
    A("s_and_b32 s55, s95, 3\ns_lshl_b32 s54, s55, 2\ns_add_u32 s54, s54, s4")
    A(f"v_and_b32 v{WT+1}, 1, v1\nv_lshlrev_b32 v{WT+1}, 10, v{WT+1}\nv_lshl_add_u32 v{WT+1}, v2, 4, v{WT+1}\ns_lshl_b32 s92, s54, 6\nv_add_u32 v{WT+1}, s92, v{WT+1}")
    A("s_mul_i32 s92, s54, 0x1c000\ns_lshr_b32 s54, s95, 3\ns_lshl_b32 s54, s54, 8\ns_add_u32 s92, s92, s54\ns_movk_i32 s93, 0xe00")
    A(f"s_mov_b32 s59, {WS_G1}\ns_cmp_lt_u32 s95, 112\ns_cselect_b32 s94, 1, 0")
    A("s_bitcmp1_b32 s2, 0\ns_cbranch_scc0 L_role")
    A("s_mov_b32 s88, s24\ns_mov_b32 s89, s25\ns_and_b32 s54, s95, 0xfc\ns_add_u32 s54, s54, s4\ns_lshl_b32 s92, s54, 15\ns_lshl_b32 s55, s55, 8\ns_add_u32 s92, s92, s55\ns_movk_i32 s93, 0x400")
    A(f"s_mov_b32 s59, {WS_F}\ns_cmp_lt_u32 s95, 56\ns_cselect_b32 s94, 2, 0")
    A("L_role:")
    if noffn: A("s_mov_b32 s94, 0")
    A(f"s_and_b32 s89, s89, 0xffff\ns_lshl_b32 s54, s95, 11\ns_add_u32 s59, s59, s54\ns_lshl_b32 s54, s93, 3\nv_mul_u32_u24 v{WT}, s54, v2\nv_lshl_add_u32 v{WT}, v3, 4, v{WT}")
    A("s_waitcnt vmcnt(9)")
    stamp(1, [0])
    for d in range(8):
        A(f"v_lshlrev_b32 v{U+2*d}, 16, v{XA+d}\nv_and_b32 v{U+2*d+1}, s51, v{XA+d}")
    def allred32(r, t):
        for n_ in (8, 4, 2, 1): A(f"v_add_f32_dpp v{r}, v{r}, v{r} row_ror:{n_} row_mask:0xf bank_mask:0xf")
        A(f"v_mov_b32 v{t}, v{r}\nv_permlane16_swap_b32 v{r}, v{t}\nv_add_f32 v{r}, v{r}, v{t}")
    for d in range(4): A(f"v_pk_add_f32 {vr(XA+2*d,2)}, {vr(U+4*d,2)}, {vr(U+4*d+2,2)}")
    A(f"v_pk_add_f32 {vr(XA,2)}, {vr(XA,2)}, {vr(XA+2,2)}\nv_pk_add_f32 {vr(XA+4,2)}, {vr(XA+4,2)}, {vr(XA+6,2)}")
    A(f"v_pk_add_f32 {vr(XA,2)}, {vr(XA,2)}, {vr(XA+4,2)}\nv_add_f32 v24, v{XA}, v{XA+1}")
    allred32(24, 25)
    A("v_mul_f32 v24, 0x3b000000, v24")
    for d in range(16): A(f"v_sub_f32 v{U+d}, v{U+d}, v24")
    A(f"v_mul_f32 v26, v{U}, v{U}\nv_mul_f32 v27, v{U+1}, v{U+1}")
    for d in range(2, 16): A(f"v_fmac_f32 v{26+(d&1)}, v{U+d}, v{U+d}")
    A("v_add_f32 v26, v26, v27")
    allred32(26, 25)
    A("v_mul_f32 v26, 0x3b000000, v26")
    A("v_cvt_pk_bf16_f32 v24, v24, v26\nv_and_b32 v26, s51, v24\nv_lshlrev_b32 v24, 16, v24")
    A("v_add_f32 v26, 0x3727c5ac, v26\nv_cvt_pk_bf16_f32 v26, v26, v26\nv_and_b32 v26, s51, v26")
    A("v_sqrt_f32 v26, v26\nv_cvt_pk_bf16_f32 v26, v26, v26\nv_and_b32 v26, s51, v26\nv_rcp_f32 v26, v26")
    A("v_readlane_b32 s60, v24, 0\nv_readlane_b32 s62, v24, 32\nv_readlane_b32 s61, v26, 0\nv_readlane_b32 s63, v26, 32")
    A("s_cmp_eq_u32 s33, 0\ns_cselect_b32 s54, s60, s62\ns_cselect_b32 s55, s61, s63")
    A("v_mov_b32 v30, s54\nv_mov_b32 v31, s55")
    def normalize(src, dst):
        for d in range(4): A(f"v_lshlrev_b32 v{U+2*d}, 16, v{src+d}\nv_and_b32 v{U+2*d+1}, s51, v{src+d}")
        for d in range(8): A(f"v_sub_f32 v{U+d}, v{U+d}, v30")
        for d in range(4): A(f"v_cvt_pk_bf16_f32 v{dst+d}, v{U+2*d}, v{U+2*d+1}")
        for d in range(4): A(f"v_lshlrev_b32 v{U+2*d}, 16, v{dst+d}\nv_and_b32 v{U+2*d+1}, s51, v{dst+d}")
        for d in range(8): A(f"v_mul_f32 v{U+d}, v{U+d}, v31")
        for d in range(4): A(f"v_cvt_pk_bf16_f32 v{dst+d}, v{U+2*d}, v{U+2*d+1}")
    def permtile(src, dst):
        for d in range(4):
            for t in range(4):
                A(f"v_perm_b32 v{dst+4*(2*d)+t}, v{src+4*(2*t+1)+d}, v{src+4*(2*t)+d}, s49")
            for t in range(4):
                A(f"v_perm_b32 v{dst+4*(2*d+1)+t}, v{src+4*(2*t+1)+d}, v{src+4*(2*t)+d}, s50")
    def mfmatile(acc, a, w, zero):
        for e in range(8):
            A(f"v_mfma_f32_16x16x32_bf16 {vr(acc+4*e,4)}, {vr(a,4)}, {vr(w+4*e,4)}, {'0' if zero else vr(acc+4*e,4)}")
    def row0_write(addr, acc, r, off):
        for e in range(0, 8, 2):
            A(f"ds_write2_b32 v{addr}, v{acc+4*e+r}, v{acc+4*(e+1)+r} offset0:{off//4+e} offset1:{off//4+e+1}")
    def poll(name, loads, sleep=0, masks=None):
        A(f"s_mov_b32 s58, {spin}")
        for i in range(len(loads)):
            m = masks[i] if masks else -1
            if m == -1: A(f"s_mov_b64 s[{80+2*i}:{81+2*i}], -1")
            else: A(f"s_mov_b32 s{80+2*i}, {hex(m & 0xffffffff)}\ns_mov_b32 s{81+2*i}, {hex(m >> 32)}")
        A(f"L_{name}:")
        for i, (l_, r) in enumerate(loads):
            A(f"s_mov_b64 exec, s[{80+2*i}:{81+2*i}]")
            if len(loads) > 1:
                A(f"s_cbranch_execz L_{name}s{i}"); A.counted = False; A(l_); A.counted = True; A(f"L_{name}s{i}:")
            else: A(l_)
        A("s_waitcnt vmcnt(0)")
        for i, (l_, r) in enumerate(loads):
            if len(loads) > 1: A(f"s_mov_b64 exec, s[{80+2*i}:{81+2*i}]")
            A(f"v_cmp_ne_u32 s[{80+2*i}:{81+2*i}], {TAG}, v{r}")
        A("s_mov_b64 exec, -1")
        if len(loads) == 1: A("s_or_b64 vcc, s[80:81], s[80:81]")
        else:
            A("s_or_b64 vcc, s[80:81], s[82:83]")
            for i in range(2, len(loads)): A(f"s_or_b64 vcc, vcc, s[{80+2*i}:{81+2*i}]")
        A(f"s_cbranch_scc0 L_{name}d")
        if sleep: A(f"s_sleep {sleep}")
        A(f"s_sub_u32 s58, s58, 1\ns_cbranch_scc0 L_{name}")
        A(f"L_{name}d:")
    def trickle(loads):
        n_ = 0
        for l_ in loads:
            if l_.startswith(("buffer_load", "global_load")):
                if n_ and n_ % trk == 0: A("s_waitcnt vmcnt(0)")
                n_ += 1
            A(l_)
    A("s_waitcnt vmcnt(8)")
    normalize(XB, AO)
    A("s_waitcnt vmcnt(0)")
    stamp(2, [0]); stamp(1, [1])
    permtile(WQ, T)
    mfmatile(D, AO, T, True)
    def xrow(regs, t):
        for i, r in enumerate(regs): A(f"v_mov_b32 v{t+i}, v{r}")
        for i, r in enumerate(regs): A(f"v_permlane32_swap_b32 v{r}, v{t+i}")
        for i, r in enumerate(regs): A(f"v_add_f32 v{r}, v{r}, v{t+i}")
        for i, r in enumerate(regs): A(f"v_mov_b32 v{t+i}, v{r}")
        for i, r in enumerate(regs): A(f"v_permlane16_swap_b32 v{r}, v{t+i}")
        for i, r in enumerate(regs): A(f"v_add_f32 v{r}, v{r}, v{t+i}")
    A("v_mov_b32 v24, 0\nv_mov_b32 v25, 1")
    A("s_lshl_b32 s54, s35, 13\ns_lshl_b32 s55, s56, 12\ns_add_u32 s55, s55, s54\ns_lshl_b32 s57, s57, 9\ns_add_u32 s55, s55, s57\nv_lshl_add_u32 v26, v1, 4, s55")
    A("s_lshl_b32 s55, s4, 10\ns_add_u32 s55, s55, s54\ns_add_u32 s55, s55, 0x1000\nv_lshl_add_u32 v4, v1, 4, s55")
    A("s_mov_b32 exec_lo, 0xff\ns_mov_b32 exec_hi, 0xff00")
    row0_write(29, D, 0, 0)
    A("s_mov_b64 exec, 1")
    A("s_waitcnt lgkmcnt(0)")
    A(f"ds_add_rtn_u32 v27, v24, v25 offset:{L_CNT}")
    A(f"s_add_u32 {TAG}, s47, 0x9e3779b9")
    A("s_waitcnt lgkmcnt(0)")
    stamp(2, [1]); stamp(3, [1])
    A("v_readfirstlane_b32 s54, v27\ns_mov_b64 exec, -1\ns_cmp_eq_u32 s54, 3\ns_cbranch_scc0 L_qwait")
    for i in range(4): A(f"ds_read_b64 {vr(XA+2*i,2)}, v28 offset:{L_YR+512*i}")
    A("s_waitcnt lgkmcnt(0)")
    A(f"v_pk_add_f32 {vr(XA,2)}, {vr(XA,2)}, {vr(XA+2,2)}\nv_pk_add_f32 {vr(XA+4,2)}, {vr(XA+4,2)}, {vr(XA+6,2)}\nv_pk_add_f32 {vr(XA,2)}, {vr(XA,2)}, {vr(XA+4,2)}")
    A(f"v_mov_b32 v{XA+4}, v{XA}\nv_mov_b32 v{XA+5}, v{XA+1}\nv_mov_b32 v{XA+2}, {TAG}\nv_permlane32_swap_b32 v{XA}, v{XA+4}\nv_permlane32_swap_b32 v{XA+1}, v{XA+5}")
    A(f"v_pk_add_f32 {vr(XA,2)}, {vr(XA,2)}, {vr(XA+4,2)}")
    A(f"s_mov_b32 exec_hi, 0\nglobal_store_dwordx4 v26, {vr(XA,4)}, s[30:31] sc1\ns_mov_b32 exec_hi, -1")
    A(f"s_mov_b64 exec, 1\nds_add_u32 v24, v25 offset:{L_CNT}\ns_mov_b64 exec, -1")
    stamp(3, [1])
    A("s_branch L_qpub")
    def ldswait(name, off, val, sleep):
        A(f"s_mov_b32 s58, {spin}\nv_mov_b32 v24, 0")
        A(f"L_{name}:")
        A(f"ds_read_b32 v27, v24 offset:{off}\ns_waitcnt lgkmcnt(0)\nv_cmp_gt_u32 vcc, {val}, v27\ns_cbranch_vccz L_{name}d")
        A(f"s_sleep {sleep}\ns_sub_u32 s58, s58, 1\ns_cbranch_scc0 L_{name}")
        A(f"L_{name}d:")
    A("L_qwait:")
    ldswait("wq", L_CNT, 5, 1)
    A("L_qpub:")
    if 'O' not in exp:
        for s in range(4):
            A(f"buffer_load_dwordx4 {vr(WO+4*s,4)}, v7, s[40:43], s45 offen {PW}")
            A(f"buffer_load_dwordx4 {vr(WO+4*(s+4),4)}, v7, s[40:43], s45 offen offset:1024 {PW}")
            if s < 3: A("s_add_u32 s45, s45, 0x2000")
    def ffnloads():
        A("s_cmp_eq_u32 s94, 0\ns_cbranch_scc1 L_nof")
        A(f"global_load_dwordx4 {vr(XB,4)}, v{WT+1}, s[8:9]")
        for s in range(8):
            A(f"buffer_load_dwordx4 {vr(UP+4*s,4)}, v{WT}, s[88:91], s92 offen {PW}")
            if s < 7: A("s_add_u32 s92, s92, s93")
        A("L_nof:")
    if 'e' in exp: ffnloads()
    if q0sleep: A(f"s_sleep {q0sleep}")
    if 'w' in exp: A("s_waitcnt vmcnt(0)")
    if 'Q' not in exp: poll("pq", [(f"global_load_dwordx4 {vr(WQ+4*i,4)}, v4, s[30:31] offset:{-4096 if i == 0 else 0} sc1", WQ + 4 * i + 2) for i in range(2)], qsleep)
    else: A("s_waitcnt vmcnt(0)")
    stamp(4, [1])
    A(f"s_lshl_b32 s54, s4, 8\nv_lshl_add_u32 v4, v1, 2, s54\nv_pk_add_f32 {vr(WQ,2)}, {vr(WQ,2)}, {vr(WQ+4,2)}\nv_cvt_pk_bf16_f32 v{WQ}, v{WQ}, v{WQ+1}")
    A(f"ds_write_b32 v4, v{WQ} offset:{L_Q}")
    A("s_waitcnt lgkmcnt(0)")
    stamp(5, [1])
    A("s_barrier")
    stamp(3, [0]); stamp(1, [2])
    if 'e' not in exp: ffnloads()
    permtile(WO, WT)
    A("s_waitcnt vmcnt(0)")
    A("v_and_b32 v4, 1, v1\ns_cmp_eq_u32 s94, 0\ns_cbranch_scc1 L_w1\ns_cmp_eq_u32 s94, 2\ns_cbranch_scc1 L_down")
    A("v_cmp_eq_u32 vcc, 1, v4\nv_mov_b32 v30, s60\nv_mov_b32 v31, s62\nv_mov_b32 v5, s61\nv_mov_b32 v6, s63")
    A("v_cndmask_b32 v30, v30, v31, vcc\nv_cndmask_b32 v31, v5, v6, vcc")
    normalize(XB, AO)
    A("s_branch L_ftile")
    A("L_down:")
    ldswait("wd", L_PRG, 48, 8)
    A(f"s_lshr_b32 s54, s95, 2\ns_lshl_b32 s54, s54, 14\ns_lshl_b32 s55, s4, 9\ns_add_u32 s54, s54, s55\ns_add_u32 s54, s54, {WS_G1+4096}")
    A("v_lshrrev_b32 v5, 5, v1\nv_lshlrev_b32 v5, 13, v5\nv_and_b32 v6, 31, v1\nv_lshl_add_u32 v5, v6, 4, v5\nv_add_u32 v5, s54, v5")
    if 'G' not in exp: poll("pg", [(f"global_load_dwordx4 {vr(D+4*i,4)}, v5, s[30:31] offset:{2048*i-4096} sc1", D + 4 * i + 2) for i in range(4)], 32)
    A(f"v_pk_add_f32 {vr(D,2)}, {vr(D,2)}, {vr(D+4,2)}\nv_pk_add_f32 {vr(D+8,2)}, {vr(D+8,2)}, {vr(D+12,2)}\nv_pk_add_f32 {vr(D,2)}, {vr(D,2)}, {vr(D+8,2)}")
    A(f"v_permlane32_swap_b32 v{D}, v{D+1}\nv_cvt_pk_bf16_f32 v24, v{D}, v{D+1}\nv_lshlrev_b32 v25, 16, v24\nv_and_b32 v24, s51, v24")
    A("v_max_f32 v25, 0, v25\nv_mul_f32 v24, v24, v25\nv_cvt_pk_bf16_f32 v24, v24, v24")
    A(f"s_lshl_b32 s54, s4, 7\ns_add_u32 s54, s54, {L_TP}\nv_lshl_add_u32 v5, v1, 1, s54\nv_lshl_add_u32 v6, v4, 6, s54\nv_lshl_add_u32 v6, v2, 4, v6")
    A(f"ds_write_b16 v5, v24\ns_waitcnt lgkmcnt(0)\nds_read_b128 {vr(AO,4)}, v6\ns_waitcnt lgkmcnt(0)")
    A("L_ftile:")
    permtile(UP, T); mfmatile(D, AO, T, True)
    A(f"v_add_u32 v5, {L_FP-L_YR}, v29\nv_add_u32 v6, {L_FP-L_YR+2048}, v29\nv_mov_b32 v24, 0\nv_mov_b32 v25, 1")
    A("s_mov_b64 exec, 0xffff")
    row0_write(5, D, 0, 0); row0_write(6, D, 1, 0)
    A("s_mov_b64 exec, 1\ns_waitcnt lgkmcnt(0)")
    A(f"ds_add_rtn_u32 v27, v24, v25 offset:{L_CNT+4}\ns_waitcnt lgkmcnt(0)")
    A("v_readfirstlane_b32 s54, v27\ns_mov_b64 exec, -1\ns_cmp_eq_u32 s54, 3\ns_cbranch_scc0 L_w1")
    A(f"v_lshlrev_b32 v5, 2, v1\nv_add_u32 v5, {L_FP}, v5")
    for hf in range(2):
        for i in range(4): A(f"ds_read2st64_b32 {vr(WQ+8*hf+2*i,2)}, v5 offset0:{2*i+hf} offset1:{8+2*i+hf}")
    A("v_lshl_add_u32 v5, v1, 4, s59\ns_waitcnt lgkmcnt(0)")
    for hf in range(2):
        r = WQ + 8 * hf
        A(f"v_pk_add_f32 {vr(r,2)}, {vr(r,2)}, {vr(r+2,2)}\nv_pk_add_f32 {vr(r+4,2)}, {vr(r+4,2)}, {vr(r+6,2)}\nv_pk_add_f32 {vr(r,2)}, {vr(r,2)}, {vr(r+4,2)}\nv_mov_b32 v{r+2}, {TAG}")
    if 'S' not in exp: A(f"global_store_dwordx4 v5, {vr(WQ,4)}, s[30:31] sc1\nglobal_store_dwordx4 v5, {vr(WQ+8,4)}, s[30:31] offset:1024 sc1")
    def rbf(r): A(f"v_cvt_pk_bf16_f32 v{r}, v{r}, v{r}\nv_and_b32 v{r}, s51, v{r}")
    G, XV, OA, H2A = 224, 225, 226, 227
    A("L_w1:")
    if ctl:
        A("s_cmp_eq_u32 s4, 3\ns_cbranch_scc0 L_noctl")
        A("s_lshr_b32 s54, s2, 5\ns_lshl_b32 s54, s54, 3\ns_add_u32 s57, s54, s32")
        A(f"s_mul_i32 s56, s57, {ctl_int}\ns_lshr_b32 s56, s56, 6\ns_add_u32 s56, s56, {ctl_t0}")
        A("s_bfe_u32 s55, s2, 0x20003\ns_lshl_b32 s55, s55, 6")
        A("L_ctl:")
        ldswait("wc", L_PRG, "s56", 2)
        A("s_mov_b32 s54, 1\ns_atomic_add s54, s[28:29], s55 glc\ns_waitcnt lgkmcnt(0)")
        A("s_sub_i32 s54, s57, s54")
        A(f"s_cmp_gt_i32 s54, {ctl_d[0]}\ns_cselect_b32 s48, 1, 0")
        if len(ctl_d) > 1: A(f"s_cmp_gt_i32 s54, {ctl_d[1]}\ns_cselect_b32 s48, 2, s48")
        A(f"v_mov_b32 v27, s48\nds_write_b32 v24, v27 offset:{L_MODE}")
        A(f"s_add_u32 s57, s57, 64\ns_add_u32 s56, s56, {ctl_int}\ns_cmp_le_u32 s56, 424\ns_cbranch_scc1 L_ctl")
        A("L_noctl:")
    A("s_cmp_eq_u32 s4, 1\ns_cbranch_scc0 L_tail\ns_cmp_lt_u32 s2, 128\ns_cbranch_scc0 L_tail")
    A("s_lshr_b32 s56, s2, 6\ns_and_b32 s57, s2, 63")
    A("v_and_b32 v4, 3, v1\nv_lshrrev_b32 v5, 2, v1\nv_lshlrev_b32 v5, 12, v5\nv_lshl_add_u32 v5, v4, 4, v5")
    A(f"s_lshl_b32 s54, s57, 6\ns_lshl_b32 s55, s56, 17\ns_add_u32 s55, s55, s54\ns_add_u32 s55, s55, {WS_H2}\nv_add_u32 v{H2A}, s55, v5\nv_add_u32 v{H2A+1}, 0x10000, v{H2A}")
    A("v_lshrrev_b32 v6, 5, v1\nv_lshl_add_u32 v6, v4, 1, v6")
    A(f"s_lshl_b32 s54, s2, 4\nv_lshl_add_u32 v{OA}, v6, 1, s54\nv_lshlrev_b32 v6, 2, v6")
    A(f"global_load_ushort v{XV}, v{OA}, s[8:9]")
    A(f"s_lshl_b32 s54, s57, 7\ns_add_u32 s54, s54, {WS_F}\nv_lshrrev_b32 v5, 3, v1\nv_lshlrev_b32 v5, 13, v5\nv_and_b32 v7, 7, v1\nv_lshl_add_u32 v5, v7, 4, v5\nv_add_u32 v5, s54, v5\nv_add_u32 v7, 0x10000, v5")
    A(f"v_mov_b32 v20, 0\nv_mov_b32 v21, 0")
    if noffn or 'F' in exp: A("s_branch L_tail")
    ldswait("wf", L_PRG, 160, 16)
    poll("pf", [("global_load_dwordx4 v[16:19], v5, s[30:31] sc1", 18), ("global_load_dwordx4 v[20:23], v7, s[30:31] sc1", 22)], 64, [-1, (1 << 48) - 1])
    A("v_pk_add_f32 v[16:17], v[16:17], v[20:21]")
    A("s_cmp_eq_u32 s56, 0\ns_cselect_b64 vcc, 0, -1\nv_cndmask_b32 v8, v16, v17, vcc")
    A("v_add_f32_dpp v8, v8, v8 row_ror:8 row_mask:0xf bank_mask:0xf")
    xrow([8], 9)
    rbf(8)
    A(f"v_mul_f32 v9, s53, v8\nv_exp_f32 v9, -v9\nv_add_f32 v9, 1.0, v9\nv_rcp_f32 v9, v9\nv_mul_f32 v8, v8, v9")
    rbf(8)
    A(f"ds_bpermute_b32 v{G}, v6, v8\nv_lshlrev_b32 v{XV}, 16, v{XV}")
    A("L_tail:")
    A(f"s_lshl_b32 s54, s4, 9\nv_add_u32 v4, s54, v28\ns_lshl_b32 s55, s4, 5\nv_mov_b32 v5, s55")
    A(f"s_lshl_b32 s56, s35, 16\ns_add_u32 s56, s56, {WS_H1}\ns_lshl_b32 s57, s4, 14\ns_add_u32 s57, s57, s56\ns_lshl_b32 s58, s34, 8\ns_add_u32 s57, s57, s58")
    A("v_lshlrev_b32 v6, 12, v2\nv_lshl_add_u32 v6, v3, 4, v6\nv_add_u32 v6, s57, v6")
    A("s_lshl_b32 s58, s7, 12\ns_add_u32 s56, s56, s58\nv_lshl_add_u32 v26, v1, 4, s56\nv_lshl_add_u32 v27, v1, 8, s56")
    A(f"s_lshl_b32 s56, s35, 2\ns_add_u32 s56, s56, s5\ns_lshl_b32 s56, s56, 12\ns_lshl_b32 s57, s6, 10\ns_add_u32 s56, s56, s57\ns_add_u32 s56, s56, {WS_H2}\nv_lshl_add_u32 v25, v1, 4, s56")
    A(f"v_mov_b32 v50, {TAG}")
    A("s_waitcnt vmcnt(0) lgkmcnt(0)")
    stamp(2, [2])
    A("s_barrier")
    stamp(4, [0]); stamp(3, [2])
    A(f"ds_read_b128 v[40:43], v5 offset:{L_ML}\nds_read_b128 v[44:47], v5 offset:{L_ML+16}")
    for i in range(4): A(f"ds_read_b64 {vr(32+2*i,2)}, v4 offset:{L_OP+2048*i}")
    A("s_waitcnt lgkmcnt(0)" if stamps else "s_waitcnt lgkmcnt(4)")
    A("v_max3_f32 v51, v40, v42, v44\nv_max_f32 v51, v51, v46")
    for i in range(4): A(f"v_sub_f32 v{40+2*i}, v{40+2*i}, v51")
    for i in range(4): A(f"v_exp_f32 v{40+2*i}, v{40+2*i}")
    A("v_mul_f32 v41, v40, v41")
    for i in range(1, 4): A(f"v_fmac_f32 v41, v{40+2*i}, v{41+2*i}")
    A("v_rcp_f32 v52, v41\nv_log_f32 v53, v41")
    A("s_waitcnt lgkmcnt(0)")
    A("v_pk_mul_f32 v[48:49], v[32:33], v[40:41] op_sel_hi:[1,0]")
    for i in range(1, 4): A(f"v_pk_fma_f32 v[48:49], {vr(32+2*i,2)}, {vr(40+2*i,2)}, v[48:49] op_sel_hi:[1,0,1]")
    A("v_add_f32 v51, v51, v53\nv_pk_mul_f32 v[48:49], v[48:49], v[52:53] op_sel_hi:[1,0]")
    A("global_store_dwordx4 v6, v[48:51], s[30:31] sc1")
    if lim >= 0:
        A("s_cmp_eq_u32 s4, 0\ns_cbranch_scc0 L_lpd")
        A(f"s_mov_b32 s58, {spin}\ns_mov_b64 exec, 0xffff")
        A("L_lp:")
        A(f"global_load_dword v12, v27, s[30:31] offset:8 sc1\ns_waitcnt vmcnt(0)\nv_cmp_ne_u32 vcc, {TAG}, v12\ns_mov_b64 exec, vcc\ns_bcnt1_i32_b64 s54, vcc")
        A(f"s_cmp_le_u32 s54, {lim}\ns_cbranch_scc1 L_lpe\ns_sub_u32 s58, s58, 1\ns_cbranch_scc0 L_lp")
        A("L_lpe:\ns_mov_b64 exec, -1\nL_lpd:\ns_barrier")
    poll("p1", [(f"global_load_dwordx4 {vr(64+4*i,4)}, v26, s[30:31] offset:{1024*i} sc1", 64 + 4 * i + 2) for i in range(4)], psleep)
    stamp(5, [0]); stamp(4, [2])
    A("v_max3_f32 v62, v67, v71, v75\nv_max_f32 v62, v62, v79")
    A("v_mov_b32 v63, v62\nv_permlane32_swap_b32 v62, v63\nv_max_f32 v62, v62, v63\nv_mov_b32 v63, v62\nv_permlane16_swap_b32 v62, v63\nv_max_f32 v62, v62, v63")
    for i in range(4): A(f"v_sub_f32 v{66+4*i}, v{67+4*i}, v62")
    for i in range(4): A(f"v_exp_f32 v{66+4*i}, v{66+4*i}")
    A("v_pk_mul_f32 v[52:53], v[64:65], v[66:67] op_sel_hi:[1,0]\nv_add_f32 v54, v66, v70")
    for i in range(1, 4): A(f"v_pk_fma_f32 v[52:53], {vr(64+4*i,2)}, {vr(66+4*i,2)}, v[52:53] op_sel_hi:[1,0,1]")
    A("v_add_f32 v55, v74, v78\nv_add_f32 v54, v54, v55")
    xrow([54, 52, 53], 56)
    A("v_rcp_f32 v54, v54\nv_pk_mul_f32 v[52:53], v[52:53], v[54:55] op_sel_hi:[1,0]\nv_cvt_pk_bf16_f32 v52, v52, v53")
    for g in range(4):
        for t in range(4): A(f"v_mov_b32_dpp v{AO+t}, v52 row_newbcast:{4*g+t} row_mask:{hex(1<<g)} bank_mask:0xf")
    mfmatile(D, AO, WT, True)
    A("s_mov_b64 exec, 0xffff")
    row0_write(29, D, 0, 0)
    A("s_mov_b64 exec, -1\ns_waitcnt lgkmcnt(0)")
    A("s_barrier")
    stamp(5, [2])
    A("s_cmp_eq_u32 s4, 0\ns_cbranch_scc0 L_fin")
    for i in range(4): A(f"ds_read_b64 {vr(XA+2*i,2)}, v28 offset:{L_YR+512*i}")
    A("s_waitcnt lgkmcnt(0)")
    A(f"v_pk_add_f32 {vr(XA,2)}, {vr(XA,2)}, {vr(XA+2,2)}\nv_pk_add_f32 {vr(XA+4,2)}, {vr(XA+4,2)}, {vr(XA+6,2)}\nv_mov_b32 v{XA+2}, {TAG}\nv_pk_add_f32 {vr(XA,2)}, {vr(XA,2)}, {vr(XA+4,2)}")
    A(f"global_store_dwordx4 v25, {vr(XA,4)}, s[30:31] sc1")
    A("s_branch L_end")
    A("L_fin:")
    A("s_cmp_eq_u32 s4, 1\ns_cbranch_scc0 L_bump\ns_cmp_lt_u32 s2, 128\ns_cbranch_scc0 L_end")
    poll("p2", [(f"global_load_dwordx4 v[16:19], v{H2A}, s[30:31] sc1", 18), (f"global_load_dwordx4 v[20:23], v{H2A+1}, s[30:31] sc1", 22)], psleep)
    A("v_pk_add_f32 v[16:17], v[16:17], v[20:21]\nv_permlane32_swap_b32 v16, v17\nv_add_f32 v8, v16, v17")
    A("v_mov_b32 v9, v8\nv_permlane16_swap_b32 v8, v9\nv_add_f32 v8, v8, v9")
    for n_ in (4, 8): A(f"v_add_f32_dpp v8, v8, v8 row_ror:{n_} row_mask:0xf bank_mask:0xf")
    rbf(8)
    A(f"v_mul_f32 v8, v8, v{G}"); rbf(8)
    A(f"v_add_f32 v8, v8, v{XV}\nv_cvt_pk_bf16_f32 v8, v8, v8")
    A("s_mov_b32 exec_lo, 15\ns_mov_b32 exec_hi, 15")
    A(f"global_store_short v{OA}, v8, s[26:27]")
    A("s_branch L_end")
    A("L_bump:")
    A("s_cmp_eq_u32 s4, 2\ns_cbranch_scc0 L_end\ns_cmp_eq_u32 s2, 255\ns_cbranch_scc0 L_end")
    A(f"v_lshlrev_b32 v4, 14, v1\nv_add_u32 v4, {WS_H2}, v4")
    poll("p3", [("global_load_dwordx4 v[16:19], v4, s[30:31] sc1", 18)], 1, [0xffff])
    A(f"s_mov_b64 exec, 1\nv_mov_b32 v4, {WS_E}\nglobal_store_dword v4, v50, s[30:31] sc1")
    A("L_end:")
    if stamps:
        A("s_waitcnt vmcnt(0)")
        stamp(6)
        A("L_stamps:")
        if leak:
            role, idx = leak[0], int(leak[1])
            A("s_waitcnt lgkmcnt(0)")
            A("s_cmp_ge_u32 s3, 4\ns_cbranch_scc%d L_exit" % (1 if role == "s" else 0))
            if len(leak) > 2: A(f"s_cmp_eq_u32 s2, {int(leak[2:])}\ns_cbranch_scc0 L_exit")
            A(f"L_leak:\ns_sleep 4\ns_memrealtime s[54:55]\ns_waitcnt lgkmcnt(0)\ns_sub_u32 s54, s54, s{64+2*idx}\ns_cmp_lt_u32 s54, 6000\ns_cbranch_scc1 L_leak")
        else:
            A("s_getreg_b32 s78, hwreg(HW_REG_XCC_ID)\ns_mov_b32 s79, 0")
            A("s_waitcnt lgkmcnt(0)\ns_mov_b64 exec, 1\ns_lshl_b32 s54, s2, 3\ns_add_u32 s54, s54, s3\ns_lshl_b32 s54, s54, 6\ns_add_u32 s54, s54, 0x10000000\nv_mov_b32 v4, s54")
            for i in range(4):
                for k in range(4): A(f"v_mov_b32 v{8+k}, s{64+4*i+k}")
                A(f"global_store_dwordx4 v4, v[8:11], s[30:31] offset:{16*i}")
    A("L_exit:")
    A("s_endpgm")
    A.check_all_edges()
    out = HEADER
    out += f"; @launch grid=(256,1,1) block=(512,1,1) lds={L_SIZE}\n"
    out += f'.amdgcn_target "amdgcn-amd-amdhsa--gfx950"\n.text\n.globl {NAME}_kernel\n.p2align 8\n.type {NAME}_kernel,@function\n'
    out += A.text()
    out += f""".section .rodata,"a"
.p2align 6
.amdhsa_kernel {NAME}_kernel
  .amdhsa_next_free_vgpr 240
  .amdhsa_next_free_sgpr 100
  .amdhsa_accum_offset 240
  .amdhsa_group_segment_fixed_size 0
  .amdhsa_kernarg_size 96
  .amdhsa_user_sgpr_count 2
  .amdhsa_user_sgpr_kernarg_segment_ptr 1
  .amdhsa_system_sgpr_workgroup_id_x 1
  .amdhsa_float_denorm_mode_32 3
.end_amdhsa_kernel
"""
    return out

if __name__ == "__main__":
    ap = argparse.ArgumentParser()
    ap.add_argument("out"); ap.add_argument("--stamps", action="store_true"); ap.add_argument("--nomimic", action="store_true")
    ap.add_argument("--thr", type=int, default=4); ap.add_argument("--sset", type=int, default=0); ap.add_argument("--qsleep", type=int, default=0); ap.add_argument("--psleep", type=int, default=0); ap.add_argument("--noffn", action="store_true"); ap.add_argument("--R", type=int, default=16); ap.add_argument("--rot", type=int, default=2); ap.add_argument("--trk", type=int, default=2); ap.add_argument("--q0sleep", type=int, default=0); ap.add_argument("--exp", default=""); ap.add_argument("--RV", type=int, default=4); ap.add_argument("--lim", type=int, default=2); ap.add_argument("--ctl", default=""); ap.add_argument("--pol", default="nnn"); ap.add_argument("--leak", default="")
    a = ap.parse_args()
    ck = {}
    if a.ctl:
        p = a.ctl.split("/")
        ck = dict(ctl=True, ctl_thr=[int(x) for x in p[0].split(",")], ctl_d=[int(x) for x in p[1].split(",")], ctl_int=int(p[2]), ctl_t0=int(p[3]))
    open(a.out, "w").write(gen(stamps=a.stamps, mimic=not a.nomimic, thr=a.thr, sset=a.sset, qsleep=a.qsleep, psleep=a.psleep, noffn=a.noffn, R=a.R, rot=a.rot, trk=a.trk, q0sleep=a.q0sleep, exp=a.exp, RV=a.RV, lim=a.lim, pol=a.pol, leak=a.leak, **ck))
```

```python
import sys, argparse
from asmlib import Asm
NAME = "recurrent_scan__gqa_block_cached__glu_gated_reglu__decode"

HEADER = open("cdna_kernels/" + NAME + ".s.ref").read().split("; Override launch")[0]

WS_QP = 0x0
WS_G1 = 0x90000
WS_F = 0x20000
WS_H2 = 0x40000
WS_E = 0x80000
WS_H1 = 0x100000
L_PRG = 0; L_MODE = 256; L_CNT = 264; L_ML = 384; L_Q = 512; L_TP = 1536; L_YR = 2048; L_OP = 4096; L_FP = 12288; L_SC = 16384; L_WO = 32768; L_FF = 65536; L_SIZE = 98304
WS_FAST = 0xE0000

def gen(stamps=False, mimic=True, thr=4, spin=1 << 16, sset=0, qsleep=0, psleep=0, noffn=False, R=16, rot=2, trk=2, q0sleep=0, exp='', RV=4, lim=-1, ctl=False, ctl_thr=(3, 2), ctl_d=(8, 24), ctl_int=32, ctl_t0=80, pol='nnn', leak='', fq=8, fh=16, wo2=7, b0first=True, toff=700, krate=57):
    PK, PV, PW = [{'n': 'nt', 'd': ''}[c] for c in pol]
    A = Asm()
    nst = [0]
    def stamp(i, sets=None):
        if stamps and (sets is None or sset in sets): A(f"s_memrealtime s[{64+2*i}:{65+2*i}]")
    def vr(a, n): return f"v[{a}:{a+n-1}]"
    lab = [0]
    def newlab(p):
        lab[0] += 1; return f"L_{p}{lab[0]}"

    A(f"{NAME}_kernel:")
    stamp(0)
    A("s_cmp_ge_u32 s2, 256\ns_cbranch_scc1 L_exit")
    A("s_load_dwordx16 s[8:23], s[0:1], 0\ns_load_dwordx8 s[24:31], s[0:1], 64")
    A("v_lshrrev_b32 v4, 6, v0\nv_and_b32 v1, 63, v0\nv_mov_b32 v6, 0\nv_readfirstlane_b32 s3, v4\nv_mov_b32 v7, 0")
    A(f"ds_write_b64 v6, v[6:7] offset:{L_CNT}\nds_write_b64 v6, v[6:7] offset:{L_MODE}")
    A("ds_write_b64 v6, v[6:7]")
    A("s_and_b32 s32, s2, 7\ns_bfe_u32 s33, s2, 0x10003\ns_lshr_b32 s34, s2, 4\ns_lshl_b32 s35, s33, 3\ns_add_u32 s35, s35, s32")
    A("v_lshrrev_b32 v2, 4, v1\nv_and_b32 v3, 15, v1")
    A("s_mov_b32 s49, 0x05040100\ns_mov_b32 s50, 0x07060302\ns_mov_b32 s51, 0xffff0000\ns_mov_b32 s53, 0x3fb8aa3b")
    A("s_mov_b32 s39, 0x20000\ns_mov_b32 s43, 0x20000")
    A("s_cmp_gt_u32 s35, 11\ns_subb_u32 s54, s35, 0\ns_cmp_gt_u32 s35, 13\ns_subb_u32 s54, s54, 0")
    A("s_lshr_b32 s55, s34, 3\ns_sub_u32 s94, 2, s55\ns_add_u32 s55, s55, 2\ns_lshl_b32 s95, s54, s55\ns_and_b32 s55, s34, 7\ns_add_u32 s95, s95, s55")
    A("s_lshr_b32 s55, s34, 2\ns_cmp_eq_u32 s55, 1\ns_cselect_b32 s94, 0, s94\ns_bitcmp1_b32 0x2800, s35\ns_cselect_b32 s94, 0, s94")
    if noffn: A("s_mov_b32 s94, 0")
    A("s_and_b32 s4, s3, 3\ns_lshr_b32 s5, s34, 2\ns_and_b32 s6, s34, 3\ns_lshl_b32 s7, s5, 2\ns_add_u32 s7, s7, s4")
    A("s_cmp_ge_u32 s3, 4\ns_cbranch_scc1 L_aux")

    Q, P, M, Lr, S, TD, D, O, T, RING = 4, 8, 12, 13, 20, 28, 32, 48, 80, 112
    def RB(slot, u): return RING + 8 * slot + 4 * u
    A("s_lshl_b32 s54, s35, 4\ns_add_u32 s54, s54, s34")
    A(f"s_mul_i32 s44, s54, {rot * 8192}\ns_and_b32 s44, s44, 0x7ffff\ns_lshl_b32 s54, s54, 19")
    A("s_lshl_b32 s55, s3, 11")
    A("v_lshrrev_b32 v14, 2, v3\nv_lshlrev_b32 v14, 8, v14\nv_and_b32 v15, 3, v1\nv_lshlrev_b32 v15, 4, v15")
    A("v_lshl_add_u32 v14, v2, 6, v14\nv_add3_u32 v14, v14, v15, s55")
    A("s_mov_b32 s38, 0x80000")
    A("v_lshlrev_b32 v16, 4, v3\nv_lshl_add_u32 v17, v2, 11, v16")
    A("s_lshl_b32 s56, s6, 8\ns_lshl_b32 s45, s32, 4\ns_add_u32 s45, s45, s7\ns_lshl_b32 s45, s45, 15\ns_add_u32 s45, s45, s56")
    A(f"s_lshl_b32 s56, s33, 14\ns_add_u32 s45, s45, s56\ns_lshl_b32 s57, s4, 13\ns_lshl_b32 s56, s33, 12\ns_add_u32 s46, s57, s56\ns_add_u32 s46, s46, {L_WO}\ns_add_u32 s47, s57, {L_FF}")
    A("s_mov_b32 s82, 0x400000\ns_mov_b32 s83, 0x20000\ns_mov_b32 s90, 0x1c0000\ns_mov_b32 s91, 0x20000")
    A("s_and_b32 s56, s95, 3\ns_lshl_b32 s57, s56, 2\ns_add_u32 s57, s57, s4\ns_mul_i32 s92, s57, 0x1c000\ns_lshr_b32 s57, s95, 3\ns_lshl_b32 s57, s57, 8\ns_add_u32 s92, s92, s57")
    A("s_and_b32 s57, s95, 0xfc\ns_add_u32 s57, s57, s4\ns_lshl_b32 s57, s57, 15\ns_lshl_b32 s56, s56, 8\ns_add_u32 s57, s57, s56")
    A("s_movk_i32 s93, 0xe00\ns_cmp_eq_u32 s94, 2\ns_cselect_b32 s92, s57, s92\ns_cselect_b32 s93, 0x400, s93\ns_lshl_b32 s57, s93, 3\nv_mad_u32_u24 v18, v2, s57, v16")
    A("s_waitcnt lgkmcnt(0)")
    A("s_add_u32 s36, s10, s54\ns_addc_u32 s37, s11, 0\ns_and_b32 s37, s37, 0xffff")
    A("s_mov_b32 s80, s16\ns_and_b32 s81, s17, 0xffff")
    A("s_bitcmp0_b32 s95, 2\ns_cselect_b32 s88, s20, s22\ns_cselect_b32 s89, s21, s23\ns_cmp_eq_u32 s94, 2\ns_cselect_b32 s88, s24, s88\ns_cselect_b32 s89, s25, s89\ns_and_b32 s89, s89, 0xffff")
    def wo_half():
        for i in range(2):
            A(f"s_mov_b32 m0, s46\ns_waitcnt vmcnt({thr})")
            A(f"buffer_load_dwordx4 v17, s[80:83], s45 offen {PW} lds\nbuffer_load_dwordx4 v17, s[80:83], s45 offen offset:1024 {PW} lds")
            A("s_xor_b32 s45, s45, 0x2000\ns_xor_b32 s46, s46, 0x800")
        A("s_xor_b32 s45, s45, 0x4000\ns_xor_b32 s46, s46, 0x1000")
    if b0first: A("s_barrier")
    if 'O' not in exp: wo_half()
    if not b0first: A("s_barrier")
    A("s_cmp_eq_u32 s94, 0\ns_cbranch_scc1 L_nof")
    for i in range(8):
        A(f"s_mov_b32 m0, s47\ns_add_u32 s47, s47, 0x400")
        if i % 2 == 0: A(f"s_waitcnt vmcnt({thr})")
        A(f"buffer_load_dwordx4 v18, s[88:91], s92 offen {PW} lds\ns_add_u32 s92, s92, s93")
    A("L_nof:")
    def issue(slot, pol=None):
        for u in range(2):
            A(f"buffer_load_dwordx4 {vr(RB(slot,u),4)}, v14, s[36:39], s44 offen offset:{u*1024} {PK if pol is None else pol}")
        A("s_add_u32 s44, s44, 0x2000\ns_and_b32 s44, s44, 0x7ffff")
        if prog and ctl: A("s_add_u32 s57, s57, 4")
        if prog: A(f"ds_add_u32 v0, v15 offset:{L_PRG}")
    def throttle():
        if not ctl:
            A(f"s_waitcnt vmcnt({thr})"); return
        l_ = newlab("th"); c_ = A.counted
        A(f"s_waitcnt vmcnt({thr})\ns_cmp_eq_u32 s45, 0\ns_cbranch_scc1 {l_}")
        A.counted = False
        if len(ctl_thr) > 1: A(f"s_waitcnt vmcnt({ctl_thr[0]})\ns_cmp_eq_u32 s45, 1\ns_cbranch_scc1 {l_}")
        A(f"s_waitcnt vmcnt({ctl_thr[-1]})")
        A(f"{l_}:"); A.counted = c_
    prog = False
    for n in range(R):
        A(f"s_waitcnt vmcnt({thr})")
        issue(n)
        if n == wo2 and 'O' not in exp: wo_half()
        if n == R - 4:
            A("s_add_u32 s40, s12, s54\ns_addc_u32 s41, s13, 0\ns_and_b32 s41, s41, 0xffff")
            for i in range(32): A(f"v_mov_b32 v{O+i}, 0")
            A(f"v_mov_b32 v{M}, 0xff7fffff\nv_mov_b32 v{Lr}, 0")
            A("v_and_b32 v16, 3, v1\nv_lshlrev_b32 v16, 8, v16\nv_lshrrev_b32 v17, 2, v1\nv_lshl_add_u32 v16, v17, 4, v16")
            A(f"s_lshl_b32 s56, s3, 12\ns_add_u32 s56, s56, {L_SC}\nv_lshl_add_u32 v19, v2, 6, v15\nv_add_u32 v19, s56, v19")
            A("s_mov_b32 s52, 0x3db504f3\ns_mov_b32 s48, 0\ns_mov_b32 s46, 0x000f000f\ns_mov_b32 s47, 0x000f000f")
    stamp(1)
    A("s_barrier")
    A(f"ds_read_b128 {vr(Q,4)}, v16 offset:{L_Q}")
    A("s_waitcnt lgkmcnt(0)")
    stamp(2)
    NIT = 64 // R
    def dpp(k):
        d0 = D + 8 * (k & 1); d1 = d0 + 4
        A(f"v_add_f32_dpp v{TD}, v{d0+3}, v{d0+2} row_shl:4 row_mask:0xf bank_mask:0xf bound_ctrl:0")
        A(f"v_add_f32_dpp v{TD+1}, v{d1+3}, v{d1+2} row_shl:4 row_mask:0xf bank_mask:0xf bound_ctrl:0")
        A(f"v_add_f32_dpp v{TD+2}, v{d0+1}, v{d0} row_shl:4 row_mask:0xf bank_mask:0xf bound_ctrl:0")
        A(f"v_add_f32_dpp v{TD+3}, v{d1+1}, v{d1} row_shl:4 row_mask:0xf bank_mask:0xf bound_ctrl:0")
    def fin(k):
        A(f"v_add_f32_dpp v{S}, v{TD}, v{TD+2} row_shl:8 row_mask:0xf bank_mask:0xf bound_ctrl:0")
        A(f"v_add_f32_dpp v{S+1}, v{TD+1}, v{TD+3} row_shl:8 row_mask:0xf bank_mask:0xf bound_ctrl:0")
        A(f"v_cvt_pk_bf16_f32 v16, v{S}, v{S+1}\nv_lshlrev_b32 v{S}, 16, v16\nv_and_b32 v{S+1}, s51, v16")
        A(f"v_mul_f32 v{S}, s52, v{S}\nv_mul_f32 v{S+1}, s52, v{S+1}")
        A(f"v_cvt_pk_bf16_f32 v{P+(k&3)}, v{S}, v{S+1}\nv_max3_f32 v{M}, v{M}, v{S}, v{S+1}")
        if k & 3 == 3:
            A(f"s_mov_b64 exec, s[46:47]\nds_write_b128 v19, {vr(P,4)} offset:{256*(k>>2)}\ns_mov_b64 exec, -1")
    ST = R // RV
    A("s_mov_b64 vcc, 0\nv_mov_b32 v17, 0\nv_mov_b32 v15, 1\ns_mov_b32 s45, 0\ns_mov_b32 s57, 0\nv_lshlrev_b32 v0, 2, v1")
    def rdmode(): A(f"ds_read2st64_b32 v[240:241], v17 offset0:0 offset1:1\ns_mov_b32 s58, s57")
    def setmode():
        A(f"v_sub_u32 v240, v241, v240\nv_readfirstlane_b32 s59, v240\ns_add_u32 s59, s59, s58\ns_cmp_gt_i32 s59, {ctl_d[0]}\ns_cselect_b32 s45, 1, 0")
        if len(ctl_d) > 1: A(f"s_cmp_gt_i32 s59, {ctl_d[1]}\ns_cselect_b32 s45, 2, s45")
    prog = True
    A("L_kloop:")
    for k in range(R):
        d0 = D + 8 * (k & 1)
        if k > 0: dpp(k - 1)
        A(f"v_mfma_f32_16x16x32_bf16 {vr(d0,4)}, {vr(RB(k,0),4)}, {vr(Q,4)}, 0")
        A(f"v_mfma_f32_16x16x32_bf16 {vr(d0+4,4)}, {vr(RB(k,1),4)}, {vr(Q,4)}, 0")
        if k % ST != ST - 1:
            l1 = newlab("ks"); A(f"s_cbranch_vccnz {l1}"); A.counted = False
        throttle()
        issue(k)
        if k % ST != ST - 1:
            A(f"{l1}:"); A.counted = True
        if ctl and k & 1 == 0: rdmode()
        if ctl and k & 1 == 1: A("s_waitcnt lgkmcnt(0)"); setmode()
        if k > 0: fin(k - 1)
    dpp(R - 1); fin(R - 1)
    A(f"s_add_u32 s48, s48, 1\nv_add_u32 v19, {64*R}, v19")
    A(f"s_cmp_lt_u32 s48, {NIT-1}\ns_cbranch_scc1 L_kloop")
    A(f"s_cmp_eq_u32 s48, {NIT-1}\ns_cbranch_scc0 L_kdone")
    A("s_mov_b32 s36, s40\ns_mov_b32 s37, s41\nv_lshl_add_u32 v14, v1, 4, s55\ns_mov_b64 vcc, -1\ns_branch L_kloop")
    A("L_kdone:")
    A(f"v_cvt_pk_bf16_f32 v{M}, v{M}, v{M}\nv_and_b32 v{M}, s51, v{M}\nv_add_u32 v19, -4096, v19")
    A(f"v_mov_b32 v18, v{M}\nv_permlane32_swap_b32 v{M}, v18\nv_max_f32 v{M}, v{M}, v18\nv_mov_b32 v18, v{M}\nv_permlane16_swap_b32 v{M}, v18\nv_max_f32 v{M}, v{M}, v18")
    for n_ in (4, 8, 12): A(f"v_mov_b32_dpp v{M}, v{M} row_shr:{n_} row_mask:0xf bank_mask:{hex(1 << (n_ // 4))}")
    A(f"v_mul_f32 v{M}, s53, v{M}")
    A("s_mov_b32 s48, 0\ns_mov_b64 vcc, 0\ns_waitcnt lgkmcnt(0)")
    stamp(5, [3])
    assert thr <= 2 * (RV - 2)
    def VP(k): return ST * k + ST - 1
    def perms(k):
        t = k & 3
        for d in range(4):
            A(f"v_perm_b32 v{T+4*(2*d)+t}, v{RB(VP(k),1)+d}, v{RB(VP(k),0)+d}, s49")
            A(f"v_perm_b32 v{T+4*(2*d+1)+t}, v{RB(VP(k),1)+d}, v{RB(VP(k),0)+d}, s50")
    nfl = (thr + 3) // 2
    def tail(k):
        rem = RV - 1 - (k + 1)
        lastwait = 2 * rem if (0 <= rem < nfl) else None
        l1 = newlab("sk")
        A(f"s_cbranch_vccnz {l1}")
        A.counted = False
        throttle()
        issue(VP(k), PV)
        if lastwait is not None:
            l2 = newlab("jn")
            A(f"s_branch {l2}\n{l1}:\ns_waitcnt vmcnt({lastwait})\n{l2}:")
        else:
            A(f"{l1}:")
        A.counted = True
    A("L_vloop:")
    for k in range(RV):
        t = k & 3
        if t == 0:
            A(f"ds_read_b128 {vr(TD,4)}, v19 offset:{256*(k>>2)}")
            if ctl: rdmode()
            perms(k)
        elif t == 1:
            perms(k)
            A("s_waitcnt lgkmcnt(0)")
            if ctl: setmode()
            for i in range(4): A(f"v_lshlrev_b32 v{S+2*i}, 16, v{TD+i}\nv_and_b32 v{S+2*i+1}, s51, v{TD+i}")
            for i in range(8): A(f"v_fma_f32 v{S+i}, v{S+i}, s53, -v{M}")
            for i in range(8): A(f"v_exp_f32 v{S+i}, v{S+i}")
        elif t == 2:
            if ctl: rdmode()
            perms(k)
            for i in range(4): A(f"v_cvt_pk_bf16_f32 v{P+i}, v{S+2*i}, v{S+2*i+1}")
            A(f"v_pk_add_f32 {vr(S,2)}, {vr(S,2)}, {vr(S+2,2)}\nv_pk_add_f32 {vr(S+4,2)}, {vr(S+4,2)}, {vr(S+6,2)}")
            A(f"v_pk_add_f32 {vr(S,2)}, {vr(S,2)}, {vr(S+4,2)}\nv_add_f32 v{Lr}, v{Lr}, v{S}\nv_add_f32 v{Lr}, v{Lr}, v{S+1}")
        else:
            perms(k)
            for e in range(8):
                A(f"v_mfma_f32_16x16x32_bf16 {vr(O+4*e,4)}, {vr(T+4*e,4)}, {vr(P,4)}, {vr(O+4*e,4)}")
            if ctl: A("s_waitcnt lgkmcnt(0)"); setmode()
        tail(k)
    A(f"v_add_u32 v19, {64*RV}, v19")
    A(f"s_add_u32 s48, s48, 1\ns_cmp_eq_u32 s48, {64//RV-1}\ns_cselect_b64 vcc, -1, 0\ns_cmp_lt_u32 s48, {64//RV}\ns_cbranch_scc1 L_vloop")
    stamp(3)
    A(f"v_mov_b32 v18, v{Lr}\nv_lshlrev_b32 v16, 9, v3\nv_lshl_add_u32 v16, v2, 7, v16\nv_permlane32_swap_b32 v{Lr}, v18\nv_add_f32 v{Lr}, v{Lr}, v18")
    A(f"v_mov_b32 v18, v{Lr}\nv_add_u32 v16, s55, v16\ns_lshl_b32 s56, s3, 3\nv_lshlrev_b32 v17, 5, v3\nv_permlane16_swap_b32 v{Lr}, v18\nv_add_f32 v{Lr}, v{Lr}, v18")
    A("v_add_u32 v17, s56, v17")
    A("s_mov_b32 exec_lo, 0x000f000f\ns_mov_b32 exec_hi, 0x000f000f")
    for e in range(8): A(f"ds_write_b128 v16, {vr(O+4*e,4)} offset:{L_OP+16*e}")
    A(f"ds_write_b64 v17, {vr(M,2)} offset:{L_ML}")
    A("s_waitcnt lgkmcnt(0)")
    A("s_barrier")
    if stamps:
        stamp(4); stamp(5, [0, 1, 2]); stamp(6); A("s_branch L_stamps")
    else:
        A("s_endpgm")

    XA, XB, AO, WQ, WO, T, D, WT, UP, U = 8, 16, 20, 32, 64, 96, 128, 160, 192, 224
    TAG = "s46"; FAR = "s45"; XCC = "s44"
    def publish(name, stores, cond):
        A(f"s_cmp_lg_u32 {cond}, 0\ns_cbranch_scc1 L_{name}x")
        for t_ in stores: A(t_)
        A(f"s_branch L_{name}y\nL_{name}x:")
        for t_ in stores: A(t_ + " sc1")
        A(f"L_{name}y:")
    A("L_aux:")
    A("s_setprio 3")
    A("v_lshlrev_b32 v4, 5, v1")
    A("v_lshrrev_b32 v24, 3, v3\nv_lshl_add_u32 v24, v24, 2, v2\nv_and_b32 v25, 7, v1")
    A("s_and_b32 s56, s34, 1\ns_lshl_b32 s57, s56, 2\ns_add_u32 s57, s57, s4")
    A("s_lshl_b32 s54, s33, 10\ns_lshl_b32 s55, s57, 7\ns_add_u32 s54, s54, s55\nv_lshl_add_u32 v5, v24, 4, s54")
    A("v_lshlrev_b32 v25, 4, v25\nv_lshl_add_u32 v6, v24, 16, v25")
    A("s_lshl_b32 s44, s57, 19\ns_lshl_b32 s55, s32, 10\ns_add_u32 s44, s44, s55\ns_lshr_b32 s57, s34, 1\ns_lshl_b32 s55, s57, 7\ns_add_u32 s44, s44, s55")
    A("s_mov_b32 s38, 0x400000")
    A("s_waitcnt lgkmcnt(0)")
    A(f"global_load_dwordx4 {vr(XA,4)}, v4, s[8:9]\nglobal_load_dwordx4 {vr(XA+4,4)}, v4, s[8:9] offset:16\nglobal_load_dwordx4 {vr(XB,4)}, v5, s[8:9]")
    A("s_mov_b32 s36, s14\ns_and_b32 s37, s15, 0xffff")
    for s in range(8):
        if 'W' not in exp: A(f"buffer_load_dwordx4 {vr(WQ+4*s,4)}, v6, s[36:39], s44 offen {PW}")
        if s < 7: A("s_add_u32 s44, s44, 0x2000")
    A(f"s_load_dword s47, s[30:31], {WS_E}")
    if ctl:
        A(f"s_lshr_b32 s98, s2, 3\ns_lshl_b32 s54, s32, 2\ns_add_u32 s98, s98, s54\ns_and_b32 s98, s98, 31\ns_mul_i32 s98, s98, 4352\ns_add_u32 s98, s98, 0x200000")
        A("s_lshl_b32 s54, s32, 2\ns_add_u32 s54, s54, s4\ns_cmp_eq_u32 s54, 3\ns_cbranch_scc0 L_norst\ns_mov_b32 s99, 0\ns_atomic_swap s99, s[30:31], s98\nL_norst:")
    A("s_barrier")
    A(f"s_lshl_b32 s54, s4, 9\ns_add_u32 s54, s54, {L_YR}\nv_lshl_add_u32 v29, v3, 5, s54")
    A("v_lshlrev_b32 v28, 3, v1")
    A(f"v_and_b32 v{WT+1}, 1, v1\nv_lshlrev_b32 v{WT+1}, 10, v{WT+1}\nv_lshl_add_u32 v{WT+1}, v2, 4, v{WT+1}")
    A(f"s_and_b32 s54, s95, 3\ns_lshl_b32 s54, s54, 2\ns_add_u32 s54, s54, s4\ns_lshl_b32 s54, s54, 6\nv_add_u32 v{WT+1}, s54, v{WT+1}")
    A(f"s_cmp_eq_u32 s94, 2\ns_cselect_b32 s59, {WS_F}, 0\ns_cselect_b32 s54, 0, {WS_G1}\ns_add_u32 s59, s59, s54\ns_lshl_b32 s54, s95, 11\ns_add_u32 s59, s59, s54")
    A(f"s_add_u32 s96, s30, {WS_FAST}\ns_addc_u32 s97, s31, 0\ns_getreg_b32 {XCC}, hwreg(HW_REG_XCC_ID, 0, 4)")
    A("s_waitcnt vmcnt(9)")
    stamp(1, [0])
    for d in range(8):
        A(f"v_lshlrev_b32 v{U+2*d}, 16, v{XA+d}\nv_and_b32 v{U+2*d+1}, s51, v{XA+d}")
    def allred32(r, t):
        for n_ in (8, 4, 2, 1): A(f"v_add_f32_dpp v{r}, v{r}, v{r} row_ror:{n_} row_mask:0xf bank_mask:0xf")
        A(f"v_mov_b32 v{t}, v{r}\nv_permlane16_swap_b32 v{r}, v{t}\nv_add_f32 v{r}, v{r}, v{t}")
    for d in range(4): A(f"v_pk_add_f32 {vr(XA+2*d,2)}, {vr(U+4*d,2)}, {vr(U+4*d+2,2)}")
    A(f"v_pk_add_f32 {vr(XA,2)}, {vr(XA,2)}, {vr(XA+2,2)}\nv_pk_add_f32 {vr(XA+4,2)}, {vr(XA+4,2)}, {vr(XA+6,2)}")
    A(f"v_pk_add_f32 {vr(XA,2)}, {vr(XA,2)}, {vr(XA+4,2)}\nv_add_f32 v24, v{XA}, v{XA+1}")
    allred32(24, 25)
    A("v_mul_f32 v24, 0x3b000000, v24")
    for d in range(16): A(f"v_sub_f32 v{U+d}, v{U+d}, v24")
    A(f"v_mul_f32 v26, v{U}, v{U}\nv_mul_f32 v27, v{U+1}, v{U+1}")
    for d in range(2, 16): A(f"v_fmac_f32 v{26+(d&1)}, v{U+d}, v{U+d}")
    A("v_add_f32 v26, v26, v27")
    allred32(26, 25)
    A("v_mul_f32 v26, 0x3b000000, v26")
    A("v_cvt_pk_bf16_f32 v24, v24, v26\nv_and_b32 v26, s51, v24\nv_lshlrev_b32 v24, 16, v24")
    A("v_add_f32 v26, 0x3727c5ac, v26\nv_cvt_pk_bf16_f32 v26, v26, v26\nv_and_b32 v26, s51, v26")
    A("v_sqrt_f32 v26, v26\nv_cvt_pk_bf16_f32 v26, v26, v26\nv_and_b32 v26, s51, v26\nv_rcp_f32 v26, v26")
    A("v_readlane_b32 s60, v24, 0\nv_readlane_b32 s62, v24, 32\nv_readlane_b32 s61, v26, 0\nv_readlane_b32 s63, v26, 32")
    A("s_cmp_eq_u32 s33, 0\ns_cselect_b32 s54, s60, s62\ns_cselect_b32 s55, s61, s63")
    A("v_mov_b32 v30, s54\nv_mov_b32 v31, s55")
    def normalize(src, dst):
        for d in range(4): A(f"v_lshlrev_b32 v{U+2*d}, 16, v{src+d}\nv_and_b32 v{U+2*d+1}, s51, v{src+d}")
        for d in range(8): A(f"v_sub_f32 v{U+d}, v{U+d}, v30")
        for d in range(4): A(f"v_cvt_pk_bf16_f32 v{dst+d}, v{U+2*d}, v{U+2*d+1}")
        for d in range(4): A(f"v_lshlrev_b32 v{U+2*d}, 16, v{dst+d}\nv_and_b32 v{U+2*d+1}, s51, v{dst+d}")
        for d in range(8): A(f"v_mul_f32 v{U+d}, v{U+d}, v31")
        for d in range(4): A(f"v_cvt_pk_bf16_f32 v{dst+d}, v{U+2*d}, v{U+2*d+1}")
    def permtile(src, dst):
        for d in range(4):
            for t in range(4):
                A(f"v_perm_b32 v{dst+4*(2*d)+t}, v{src+4*(2*t+1)+d}, v{src+4*(2*t)+d}, s49")
            for t in range(4):
                A(f"v_perm_b32 v{dst+4*(2*d+1)+t}, v{src+4*(2*t+1)+d}, v{src+4*(2*t)+d}, s50")
    def mfmatile(acc, a, w, zero):
        for e in range(8):
            A(f"v_mfma_f32_16x16x32_bf16 {vr(acc+4*e,4)}, {vr(a,4)}, {vr(w+4*e,4)}, {'0' if zero else vr(acc+4*e,4)}")
    def row0_write(addr, acc, r, off):
        for e in range(0, 8, 2):
            A(f"ds_write2_b32 v{addr}, v{acc+4*e+r}, v{acc+4*(e+1)+r} offset0:{off//4+e} offset1:{off//4+e+1}")
    def poll(name, loads, sleep=0, masks=None, fast=0):
        A(f"s_mov_b32 s58, {spin}")
        for i in range(len(loads)):
            m = masks[i] if masks else -1
            if m == -1: A(f"s_mov_b64 s[{80+2*i}:{81+2*i}], -1")
            else: A(f"s_mov_b32 s{80+2*i}, {hex(m & 0xffffffff)}\ns_mov_b32 s{81+2*i}, {hex(m >> 32)}")
        A(f"L_{name}:")
        def rnd_(tag_, conv):
            for i, (l_, r) in enumerate(loads):
                A(f"s_mov_b64 exec, s[{80+2*i}:{81+2*i}]")
                if len(loads) > 1:
                    A(f"s_cbranch_execz L_{name}{tag_}{i}"); A.counted = False; A(conv(l_)); A.counted = True; A(f"L_{name}{tag_}{i}:")
                else: A(conv(l_))
        if fast == "near":
            A(f"s_cmp_lg_u32 {FAR}, 0\ns_cbranch_scc1 L_{name}x")
            rnd_("f", lambda t_: t_.replace(" sc1", " nt"))
            A(f"s_branch L_{name}y\nL_{name}x:")
        elif fast:
            A(f"s_and_b32 s54, s58, {fast-1}\ns_cmp_eq_u32 s54, 1\ns_cbranch_scc1 L_{name}x")
            rnd_("f", lambda t_: t_.replace("s[30:31]", "s[96:97]").replace(" sc1", " nt"))
            A(f"s_branch L_{name}y\nL_{name}x:")
        rnd_("s", lambda t_: t_)
        if fast: A(f"L_{name}y:")
        A("s_waitcnt vmcnt(0)")
        for i, (l_, r) in enumerate(loads):
            if len(loads) > 1: A(f"s_mov_b64 exec, s[{80+2*i}:{81+2*i}]")
            A(f"v_cmp_ne_u32 s[{80+2*i}:{81+2*i}], {TAG}, v{r}")
        A("s_mov_b64 exec, -1")
        if len(loads) == 1: A("s_or_b64 vcc, s[80:81], s[80:81]")
        else:
            A("s_or_b64 vcc, s[80:81], s[82:83]")
            for i in range(2, len(loads)): A(f"s_or_b64 vcc, vcc, s[{80+2*i}:{81+2*i}]")
        A(f"s_cbranch_scc0 L_{name}d")
        if sleep: A(f"s_sleep {sleep}")
        A(f"s_sub_u32 s58, s58, 1\ns_cbranch_scc0 L_{name}")
        A(f"L_{name}d:")
    def trickle(loads):
        n_ = 0
        for l_ in loads:
            if l_.startswith(("buffer_load", "global_load")):
                if n_ and n_ % trk == 0: A("s_waitcnt vmcnt(0)")
                n_ += 1
            A(l_)
    A("s_waitcnt vmcnt(8)")
    normalize(XB, AO)
    A("s_waitcnt vmcnt(0)")
    stamp(2, [0]); stamp(1, [1])
    permtile(WQ, T)
    mfmatile(D, AO, T, True)
    def xrow(regs, t):
        for i, r in enumerate(regs): A(f"v_mov_b32 v{t+i}, v{r}")
        for i, r in enumerate(regs): A(f"v_permlane32_swap_b32 v{r}, v{t+i}")
        for i, r in enumerate(regs): A(f"v_add_f32 v{r}, v{r}, v{t+i}")
        for i, r in enumerate(regs): A(f"v_mov_b32 v{t+i}, v{r}")
        for i, r in enumerate(regs): A(f"v_permlane16_swap_b32 v{r}, v{t+i}")
        for i, r in enumerate(regs): A(f"v_add_f32 v{r}, v{r}, v{t+i}")
    A("v_mov_b32 v24, 0\nv_mov_b32 v25, 1")
    A("s_lshl_b32 s54, s35, 13\ns_lshl_b32 s55, s56, 12\ns_add_u32 s55, s55, s54\ns_lshl_b32 s57, s57, 9\ns_add_u32 s55, s55, s57\nv_lshl_add_u32 v26, v1, 4, s55")
    A("s_lshl_b32 s55, s4, 10\ns_add_u32 s55, s55, s54\ns_add_u32 s55, s55, 0x1000\nv_lshl_add_u32 v4, v1, 4, s55")
    A("s_mov_b32 exec_lo, 0xff\ns_mov_b32 exec_hi, 0xff00")
    row0_write(29, D, 0, 0)
    A("s_mov_b64 exec, 1")
    A("s_waitcnt lgkmcnt(0)")
    A(f"ds_add_rtn_u32 v27, v24, v25 offset:{L_CNT}")
    A(f"s_add_u32 {TAG}, s47, 0x9e3779b9")
    A("s_waitcnt lgkmcnt(0)")
    stamp(2, [1]); stamp(3, [1])
    A("v_readfirstlane_b32 s54, v27\ns_mov_b64 exec, -1\ns_cmp_eq_u32 s54, 3\ns_cbranch_scc0 L_qwait")
    for i in range(4): A(f"ds_read_b64 {vr(XA+2*i,2)}, v28 offset:{L_YR+512*i}")
    A("s_waitcnt lgkmcnt(0)")
    A(f"v_pk_add_f32 {vr(XA,2)}, {vr(XA,2)}, {vr(XA+2,2)}\nv_pk_add_f32 {vr(XA+4,2)}, {vr(XA+4,2)}, {vr(XA+6,2)}\nv_pk_add_f32 {vr(XA,2)}, {vr(XA,2)}, {vr(XA+4,2)}")
    A(f"v_mov_b32 v{XA+4}, v{XA}\nv_mov_b32 v{XA+5}, v{XA+1}\nv_mov_b32 v{XA+2}, {TAG}\nv_mov_b32 v{XA+3}, {XCC}\nv_permlane32_swap_b32 v{XA}, v{XA+4}\nv_permlane32_swap_b32 v{XA+1}, v{XA+5}")
    A(f"v_pk_add_f32 {vr(XA,2)}, {vr(XA,2)}, {vr(XA+4,2)}")
    A("s_mov_b32 exec_hi, 0")
    if fq: A(f"global_store_dwordx4 v26, {vr(XA,4)}, s[96:97]")
    A(f"global_store_dwordx4 v26, {vr(XA,4)}, s[30:31] sc1\ns_mov_b32 exec_hi, -1")
    stamp(3, [1])
    def ldswait(name, off, val, sleep):
        A(f"s_mov_b32 s58, {spin}\nv_mov_b32 v24, 0")
        A(f"L_{name}:")
        A(f"ds_read_b32 v27, v24 offset:{off}\ns_waitcnt lgkmcnt(0)\nv_cmp_gt_u32 vcc, {val}, v27\ns_cbranch_vccz L_{name}d")
        A(f"s_sleep {sleep}\ns_sub_u32 s58, s58, 1\ns_cbranch_scc0 L_{name}")
        A(f"L_{name}d:")
    A("L_qwait:")
    if q0sleep: A(f"s_sleep {q0sleep}")
    if 'w' in exp: A("s_waitcnt vmcnt(0)")
    if 'Q' not in exp: poll("pq", [(f"global_load_dwordx4 {vr(WQ+4*i,4)}, v4, s[30:31] offset:{-4096 if i == 0 else 0} sc1", WQ + 4 * i + 2) for i in range(2)], qsleep, None, fq)
    else: A("s_waitcnt vmcnt(0)")
    stamp(4, [1])
    A(f"s_lshl_b32 s54, s4, 8\nv_lshl_add_u32 v4, v1, 2, s54\nv_pk_add_f32 {vr(WQ,2)}, {vr(WQ,2)}, {vr(WQ+4,2)}\nv_cvt_pk_bf16_f32 v{WQ}, v{WQ}, v{WQ+1}")
    A(f"ds_write_b32 v4, v{WQ} offset:{L_Q}")
    A(f"v_xor_b32 v5, {XCC}, v{WQ+3}\nv_bitop3_b32 v5, v5, v{WQ+7}, {XCC} bitop3:0xf6\nv_mov_b32 v24, 0")
    if 'R' in exp: A("v_mov_b32 v5, 1")
    A(f"v_cmp_ne_u32 vcc, 0, v5\ns_mov_b64 exec, vcc\ns_cbranch_execz L_near\nds_write_b32 v24, v5 offset:{L_MODE+4}\nL_near:\ns_mov_b64 exec, -1")
    A("s_waitcnt lgkmcnt(0)")
    stamp(5, [1])
    A("s_barrier")
    stamp(3, [0]); stamp(1, [2])
    A(f"s_setprio 0\nglobal_load_dwordx4 {vr(XB,4)}, v{WT+1}, s[8:9]")
    A(f"s_lshl_b32 s54, s4, 13\ns_add_u32 s54, s54, {L_WO}\nv_lshl_add_u32 v4, v1, 4, s54")
    for s in range(8): A(f"ds_read_b128 {vr(WO+4*s,4)}, v4 offset:{(s&3)*2048+(s>>2)*1024}")
    for s in range(8): A(f"ds_read_b128 {vr(UP+4*s,4)}, v4 offset:{L_FF-L_WO+s*1024}")
    A(f"ds_read_b32 v5, v24 offset:{L_MODE+4}\ns_waitcnt lgkmcnt(0)\nv_readfirstlane_b32 {FAR}, v5")
    permtile(WO, WT)
    A("s_waitcnt vmcnt(0)")
    A("v_and_b32 v4, 1, v1\ns_cmp_eq_u32 s94, 0\ns_cbranch_scc1 L_w1\ns_cmp_eq_u32 s94, 2\ns_cbranch_scc1 L_down")
    A("v_cmp_eq_u32 vcc, 1, v4\nv_mov_b32 v30, s60\nv_mov_b32 v31, s62\nv_mov_b32 v5, s61\nv_mov_b32 v6, s63")
    A("v_cndmask_b32 v30, v30, v31, vcc\nv_cndmask_b32 v31, v5, v6, vcc")
    normalize(XB, AO)
    A("s_branch L_ftile")
    A("L_down:")
    ldswait("wd", L_PRG, 48, 8)
    A(f"s_lshr_b32 s54, s95, 2\ns_lshl_b32 s54, s54, 14\ns_lshl_b32 s55, s4, 9\ns_add_u32 s54, s54, s55\ns_add_u32 s54, s54, {WS_G1+4096}")
    A("v_lshrrev_b32 v5, 5, v1\nv_lshlrev_b32 v5, 13, v5\nv_and_b32 v6, 31, v1\nv_lshl_add_u32 v5, v6, 4, v5\nv_add_u32 v5, s54, v5")
    if 'G' not in exp: poll("pg", [(f"global_load_dwordx4 {vr(D+4*i,4)}, v5, s[30:31] offset:{2048*i-4096} sc1", D + 4 * i + 2) for i in range(4)], 32, None, 'near')
    A(f"v_pk_add_f32 {vr(D,2)}, {vr(D,2)}, {vr(D+4,2)}\nv_pk_add_f32 {vr(D+8,2)}, {vr(D+8,2)}, {vr(D+12,2)}\nv_pk_add_f32 {vr(D,2)}, {vr(D,2)}, {vr(D+8,2)}")
    A(f"v_permlane32_swap_b32 v{D}, v{D+1}\nv_cvt_pk_bf16_f32 v24, v{D}, v{D+1}\nv_lshlrev_b32 v25, 16, v24\nv_and_b32 v24, s51, v24")
    A("v_max_f32 v25, 0, v25\nv_mul_f32 v24, v24, v25\nv_cvt_pk_bf16_f32 v24, v24, v24")
    A(f"s_lshl_b32 s54, s4, 7\ns_add_u32 s54, s54, {L_TP}\nv_lshl_add_u32 v5, v1, 1, s54\nv_lshl_add_u32 v6, v4, 6, s54\nv_lshl_add_u32 v6, v2, 4, v6")
    A(f"ds_write_b16 v5, v24\ns_waitcnt lgkmcnt(0)\nds_read_b128 {vr(AO,4)}, v6\ns_waitcnt lgkmcnt(0)")
    A("L_ftile:")
    permtile(UP, T); mfmatile(D, AO, T, True)
    A(f"v_add_u32 v5, {L_FP-L_YR}, v29\nv_add_u32 v6, {L_FP-L_YR+2048}, v29\nv_mov_b32 v24, 0\nv_mov_b32 v25, 1")
    A("s_mov_b64 exec, 0xffff")
    row0_write(5, D, 0, 0); row0_write(6, D, 1, 0)
    A("s_mov_b64 exec, 1\ns_waitcnt lgkmcnt(0)")
    A(f"ds_add_rtn_u32 v27, v24, v25 offset:{L_CNT+4}\ns_waitcnt lgkmcnt(0)")
    A("v_readfirstlane_b32 s54, v27\ns_mov_b64 exec, -1\ns_cmp_eq_u32 s54, 3\ns_cbranch_scc0 L_w1")
    A(f"v_lshlrev_b32 v5, 2, v1\nv_add_u32 v5, {L_FP}, v5")
    for hf in range(2):
        for i in range(4): A(f"ds_read2st64_b32 {vr(WQ+8*hf+2*i,2)}, v5 offset0:{2*i+hf} offset1:{8+2*i+hf}")
    A("v_lshl_add_u32 v5, v1, 4, s59\ns_waitcnt lgkmcnt(0)")
    for hf in range(2):
        r = WQ + 8 * hf
        A(f"v_pk_add_f32 {vr(r,2)}, {vr(r,2)}, {vr(r+2,2)}\nv_pk_add_f32 {vr(r+4,2)}, {vr(r+4,2)}, {vr(r+6,2)}\nv_pk_add_f32 {vr(r,2)}, {vr(r,2)}, {vr(r+4,2)}\nv_mov_b32 v{r+2}, {TAG}")
    A(f"s_lshr_b32 s54, s94, 1\ns_or_b32 s54, s54, {FAR}")
    if 'S' not in exp: publish("sf", [f"global_store_dwordx4 v5, {vr(WQ,4)}, s[30:31]", f"global_store_dwordx4 v5, {vr(WQ+8,4)}, s[30:31] offset:1024"], "s54")
    def rbf(r): A(f"v_cvt_pk_bf16_f32 v{r}, v{r}, v{r}\nv_and_b32 v{r}, s51, v{r}")
    G, XV, OA, H2A = 224, 225, 226, 227
    A("L_w1:")
    if ctl:
        A("s_cmp_eq_u32 s4, 3\ns_cbranch_scc0 L_noctl")
        if 'X' in exp: A("s_branch L_noctl")
        A(f"s_mov_b32 s57, s32\ns_mul_i32 s56, s32, {ctl_int//8}\ns_add_u32 s56, s56, {ctl_t0}")
        A("L_ctl:")
        ldswait("wc", L_PRG, "s56", 2)
        A("s_mov_b32 s54, 1\ns_atomic_add s54, s[30:31], s98 glc\ns_waitcnt lgkmcnt(0)")
        A(f"s_sub_i32 s54, s57, s54\ns_add_u32 s55, s54, 64\ns_cmp_lt_u32 s55, 128\ns_cselect_b32 s54, s54, 0\ns_mul_i32 s54, s54, {ctl_int//8}")
        A(f"v_mov_b32 v27, s54\nds_write_b32 v24, v27 offset:{L_PRG+256}")
        A(f"s_add_u32 s57, s57, 8\ns_add_u32 s56, s56, {ctl_int}\ns_cmp_le_u32 s56, 420\ns_cbranch_scc1 L_ctl")
        A("L_noctl:")
    A("s_cmp_eq_u32 s4, 1\ns_cbranch_scc0 L_tail\ns_cmp_lt_u32 s2, 128\ns_cbranch_scc0 L_tail")
    A("s_lshr_b32 s56, s2, 6\ns_and_b32 s57, s2, 63")
    A("v_and_b32 v4, 3, v1\nv_lshrrev_b32 v5, 2, v1\nv_lshlrev_b32 v5, 12, v5\nv_lshl_add_u32 v5, v4, 4, v5")
    A(f"s_lshl_b32 s54, s57, 6\ns_lshl_b32 s55, s56, 17\ns_add_u32 s55, s55, s54\ns_add_u32 s55, s55, {WS_H2}\nv_add_u32 v{H2A}, s55, v5\nv_add_u32 v{H2A+1}, 0x10000, v{H2A}")
    A("v_lshrrev_b32 v6, 5, v1\nv_lshl_add_u32 v6, v4, 1, v6")
    A(f"s_lshl_b32 s54, s2, 4\nv_lshl_add_u32 v{OA}, v6, 1, s54\nv_lshlrev_b32 v6, 2, v6")
    A(f"global_load_ushort v{XV}, v{OA}, s[8:9]")
    A(f"s_lshl_b32 s54, s57, 7\ns_add_u32 s54, s54, {WS_F}\nv_lshrrev_b32 v5, 3, v1\nv_lshlrev_b32 v5, 13, v5\nv_and_b32 v7, 7, v1\nv_lshl_add_u32 v5, v7, 4, v5\nv_add_u32 v5, s54, v5\nv_add_u32 v7, 0x10000, v5")
    A(f"v_mov_b32 v20, 0\nv_mov_b32 v21, 0")
    if noffn or 'F' in exp: A("s_branch L_tail")
    ldswait("wf", L_PRG, 160, 16)
    poll("pf", [("global_load_dwordx4 v[16:19], v5, s[30:31] sc1", 18), ("global_load_dwordx4 v[20:23], v7, s[30:31] sc1", 22)], 64, [-1, (1 << 48) - 1])
    A("v_pk_add_f32 v[16:17], v[16:17], v[20:21]")
    A("s_cmp_eq_u32 s56, 0\ns_cselect_b64 vcc, 0, -1\nv_cndmask_b32 v8, v16, v17, vcc")
    A("v_add_f32_dpp v8, v8, v8 row_ror:8 row_mask:0xf bank_mask:0xf")
    xrow([8], 9)
    rbf(8)
    A(f"v_mul_f32 v9, s53, v8\nv_exp_f32 v9, -v9\nv_add_f32 v9, 1.0, v9\nv_rcp_f32 v9, v9\nv_mul_f32 v8, v8, v9")
    rbf(8)
    A(f"ds_bpermute_b32 v{G}, v6, v8\nv_lshlrev_b32 v{XV}, 16, v{XV}")
    A("L_tail:")
    A(f"s_lshl_b32 s54, s4, 9\nv_add_u32 v4, s54, v28\ns_lshl_b32 s55, s4, 5\nv_mov_b32 v5, s55")
    A(f"s_lshl_b32 s56, s35, 16\ns_add_u32 s56, s56, {WS_H1}\ns_lshl_b32 s57, s4, 14\ns_add_u32 s57, s57, s56\ns_lshl_b32 s58, s34, 8\ns_add_u32 s57, s57, s58")
    A("v_lshlrev_b32 v6, 12, v2\nv_lshl_add_u32 v6, v3, 4, v6\nv_add_u32 v6, s57, v6")
    A("s_lshl_b32 s58, s7, 12\ns_add_u32 s56, s56, s58\nv_lshl_add_u32 v26, v1, 4, s56\nv_lshl_add_u32 v27, v1, 8, s56")
    A(f"s_lshl_b32 s56, s35, 2\ns_add_u32 s56, s56, s5\ns_lshl_b32 s56, s56, 12\ns_lshl_b32 s57, s6, 10\ns_add_u32 s56, s56, s57\ns_add_u32 s56, s56, {WS_H2}\nv_lshl_add_u32 v25, v1, 4, s56")
    A(f"v_mov_b32 v50, {TAG}")
    A("s_waitcnt vmcnt(0) lgkmcnt(0)")
    stamp(2, [2])
    A("s_barrier")
    stamp(4, [0]); stamp(3, [2])
    A(f"ds_read_b128 v[40:43], v5 offset:{L_ML}\nds_read_b128 v[44:47], v5 offset:{L_ML+16}")
    for i in range(4): A(f"ds_read_b64 {vr(32+2*i,2)}, v4 offset:{L_OP+2048*i}")
    A("s_waitcnt lgkmcnt(0)" if stamps else "s_waitcnt lgkmcnt(4)")
    A("v_max3_f32 v51, v40, v42, v44\nv_max_f32 v51, v51, v46")
    for i in range(4): A(f"v_sub_f32 v{40+2*i}, v{40+2*i}, v51")
    for i in range(4): A(f"v_exp_f32 v{40+2*i}, v{40+2*i}")
    A("v_mul_f32 v41, v40, v41")
    for i in range(1, 4): A(f"v_fmac_f32 v41, v{40+2*i}, v{41+2*i}")
    A("v_rcp_f32 v52, v41\nv_log_f32 v53, v41")
    A("s_waitcnt lgkmcnt(0)")
    A("v_pk_mul_f32 v[48:49], v[32:33], v[40:41] op_sel_hi:[1,0]")
    for i in range(1, 4): A(f"v_pk_fma_f32 v[48:49], {vr(32+2*i,2)}, {vr(40+2*i,2)}, v[48:49] op_sel_hi:[1,0,1]")
    A("v_add_f32 v51, v51, v53\nv_pk_mul_f32 v[48:49], v[48:49], v[52:53] op_sel_hi:[1,0]")
    publish("sh", ["global_store_dwordx4 v6, v[48:51], s[30:31]"], FAR)
    if lim >= 0:
        A("s_cmp_eq_u32 s4, 0\ns_cbranch_scc0 L_lpd")
        A(f"s_mov_b32 s58, {spin}\ns_mov_b64 exec, 0xffff")
        A("L_lp:")
        A(f"global_load_dword v12, v27, s[30:31] offset:8 sc1\ns_waitcnt vmcnt(0)\nv_cmp_ne_u32 vcc, {TAG}, v12\ns_mov_b64 exec, vcc\ns_bcnt1_i32_b64 s54, vcc")
        A(f"s_cmp_le_u32 s54, {lim}\ns_cbranch_scc1 L_lpe\ns_sub_u32 s58, s58, 1\ns_cbranch_scc0 L_lp")
        A("L_lpe:\ns_mov_b64 exec, -1\nL_lpd:\ns_barrier")
    poll("p1", [(f"global_load_dwordx4 {vr(64+4*i,4)}, v26, s[30:31] offset:{1024*i} sc1", 64 + 4 * i + 2) for i in range(4)], psleep, None, 'near')
    stamp(5, [0]); stamp(4, [2])
    A("v_max3_f32 v62, v67, v71, v75\nv_max_f32 v62, v62, v79")
    A("v_mov_b32 v63, v62\nv_permlane32_swap_b32 v62, v63\nv_max_f32 v62, v62, v63\nv_mov_b32 v63, v62\nv_permlane16_swap_b32 v62, v63\nv_max_f32 v62, v62, v63")
    for i in range(4): A(f"v_sub_f32 v{66+4*i}, v{67+4*i}, v62")
    for i in range(4): A(f"v_exp_f32 v{66+4*i}, v{66+4*i}")
    A("v_pk_mul_f32 v[52:53], v[64:65], v[66:67] op_sel_hi:[1,0]\nv_add_f32 v54, v66, v70")
    for i in range(1, 4): A(f"v_pk_fma_f32 v[52:53], {vr(64+4*i,2)}, {vr(66+4*i,2)}, v[52:53] op_sel_hi:[1,0,1]")
    A("v_add_f32 v55, v74, v78\nv_add_f32 v54, v54, v55")
    xrow([54, 52, 53], 56)
    A("v_rcp_f32 v54, v54\nv_pk_mul_f32 v[52:53], v[52:53], v[54:55] op_sel_hi:[1,0]\nv_cvt_pk_bf16_f32 v52, v52, v53")
    for g in range(4):
        for t in range(4): A(f"v_mov_b32_dpp v{AO+t}, v52 row_newbcast:{4*g+t} row_mask:{hex(1<<g)} bank_mask:0xf")
    mfmatile(D, AO, WT, True)
    A("s_mov_b64 exec, 0xffff")
    row0_write(29, D, 0, 0)
    A("s_mov_b64 exec, -1\ns_waitcnt lgkmcnt(0)")
    A("s_barrier")
    stamp(5, [2])
    A("s_cmp_eq_u32 s4, 0\ns_cbranch_scc0 L_fin")
    for i in range(4): A(f"ds_read_b64 {vr(XA+2*i,2)}, v28 offset:{L_YR+512*i}")
    A("s_waitcnt lgkmcnt(0)")
    A(f"v_pk_add_f32 {vr(XA,2)}, {vr(XA,2)}, {vr(XA+2,2)}\nv_pk_add_f32 {vr(XA+4,2)}, {vr(XA+4,2)}, {vr(XA+6,2)}\nv_mov_b32 v{XA+2}, {TAG}\nv_pk_add_f32 {vr(XA,2)}, {vr(XA,2)}, {vr(XA+4,2)}")
    A(f"global_store_dwordx4 v25, {vr(XA,4)}, s[30:31] sc1")
    A("s_branch L_end")
    A("L_fin:")
    A("s_cmp_eq_u32 s4, 1\ns_cbranch_scc0 L_bump\ns_cmp_lt_u32 s2, 128\ns_cbranch_scc0 L_end")
    poll("p2", [(f"global_load_dwordx4 v[16:19], v{H2A}, s[30:31] sc1", 18), (f"global_load_dwordx4 v[20:23], v{H2A+1}, s[30:31] sc1", 22)], psleep)
    A("v_pk_add_f32 v[16:17], v[16:17], v[20:21]\nv_permlane32_swap_b32 v16, v17\nv_add_f32 v8, v16, v17")
    A("v_mov_b32 v9, v8\nv_permlane16_swap_b32 v8, v9\nv_add_f32 v8, v8, v9")
    for n_ in (4, 8): A(f"v_add_f32_dpp v8, v8, v8 row_ror:{n_} row_mask:0xf bank_mask:0xf")
    rbf(8)
    A(f"v_mul_f32 v8, v8, v{G}"); rbf(8)
    A(f"v_add_f32 v8, v8, v{XV}\nv_cvt_pk_bf16_f32 v8, v8, v8")
    A("s_mov_b32 exec_lo, 15\ns_mov_b32 exec_hi, 15")
    A(f"global_store_short v{OA}, v8, s[26:27]")
    A("s_branch L_end")
    A("L_bump:")
    A("s_cmp_eq_u32 s4, 2\ns_cbranch_scc0 L_end\ns_cmp_eq_u32 s2, 255\ns_cbranch_scc0 L_end")
    A(f"v_lshlrev_b32 v4, 14, v1\nv_add_u32 v4, {WS_H2}, v4")
    poll("p3", [("global_load_dwordx4 v[16:19], v4, s[30:31] sc1", 18)], 1, [0xffff])
    A(f"s_mov_b64 exec, 1\nv_mov_b32 v4, {WS_E}\nglobal_store_dword v4, v50, s[30:31] sc1")
    A("L_end:")
    if stamps:
        A("s_waitcnt vmcnt(0)")
        stamp(6)
        A("L_stamps:")
        if leak:
            role, idx = leak[0], int(leak[1])
            A("s_waitcnt lgkmcnt(0)")
            A("s_cmp_ge_u32 s3, 4\ns_cbranch_scc%d L_exit" % (1 if role == "s" else 0))
            if len(leak) > 2: A(f"s_cmp_eq_u32 s2, {int(leak[2:])}\ns_cbranch_scc0 L_exit")
            A(f"L_leak:\ns_sleep 4\ns_memrealtime s[54:55]\ns_waitcnt lgkmcnt(0)\ns_sub_u32 s54, s54, s{64+2*idx}\ns_cmp_lt_u32 s54, 6000\ns_cbranch_scc1 L_leak")
        else:
            A("s_getreg_b32 s78, hwreg(HW_REG_XCC_ID)\ns_mov_b32 s79, 0")
            A("s_waitcnt lgkmcnt(0)\ns_mov_b64 exec, 1\ns_lshl_b32 s54, s2, 3\ns_add_u32 s54, s54, s3\ns_lshl_b32 s54, s54, 6\ns_add_u32 s54, s54, 0x10000000\nv_mov_b32 v4, s54")
            for i in range(4):
                for k in range(4): A(f"v_mov_b32 v{8+k}, s{64+4*i+k}")
                A(f"global_store_dwordx4 v4, v[8:11], s[30:31] offset:{16*i}")
    A("L_exit:")
    A("s_endpgm")
    A.check_all_edges()
    out = HEADER
    out += f"; @launch grid=(256,1,1) block=(512,1,1) lds={L_SIZE}\n"
    out += f'.amdgcn_target "amdgcn-amd-amdhsa--gfx950"\n.text\n.globl {NAME}_kernel\n.p2align 8\n.type {NAME}_kernel,@function\n'
    out += A.text()
    out += f""".section .rodata,"a"
.p2align 6
.amdhsa_kernel {NAME}_kernel
  .amdhsa_next_free_vgpr 244
  .amdhsa_next_free_sgpr 100
  .amdhsa_accum_offset 244
  .amdhsa_group_segment_fixed_size 0
  .amdhsa_kernarg_size 96
  .amdhsa_user_sgpr_count 2
  .amdhsa_user_sgpr_kernarg_segment_ptr 1
  .amdhsa_system_sgpr_workgroup_id_x 1
  .amdhsa_float_denorm_mode_32 3
.end_amdhsa_kernel
"""
    return out

if __name__ == "__main__":
    ap = argparse.ArgumentParser()
    ap.add_argument("out"); ap.add_argument("--stamps", action="store_true"); ap.add_argument("--nomimic", action="store_true")
    ap.add_argument("--thr", type=int, default=4); ap.add_argument("--sset", type=int, default=0); ap.add_argument("--qsleep", type=int, default=0); ap.add_argument("--psleep", type=int, default=0); ap.add_argument("--noffn", action="store_true"); ap.add_argument("--R", type=int, default=16); ap.add_argument("--rot", type=int, default=2); ap.add_argument("--trk", type=int, default=2); ap.add_argument("--q0sleep", type=int, default=0); ap.add_argument("--exp", default=""); ap.add_argument("--RV", type=int, default=4); ap.add_argument("--lim", type=int, default=-1); ap.add_argument("--ctl", default=""); ap.add_argument("--pol", default="nnn"); ap.add_argument("--leak", default=""); ap.add_argument("--fq", type=int, default=8); ap.add_argument("--fh", type=int, default=16); ap.add_argument("--wo2", type=int, default=7); ap.add_argument("--b0late", action="store_true"); ap.add_argument("--toff", type=int, default=700); ap.add_argument("--krate", type=int, default=57)
    a = ap.parse_args()
    ck = {}
    if a.ctl:
        p = a.ctl.split("/")
        ck = dict(ctl=True, ctl_thr=[int(x) for x in p[0].split(",")], ctl_d=[int(x) for x in p[1].split(",")], ctl_int=int(p[2]), ctl_t0=int(p[3]))
    open(a.out, "w").write(gen(stamps=a.stamps, mimic=not a.nomimic, thr=a.thr, sset=a.sset, qsleep=a.qsleep, psleep=a.psleep, noffn=a.noffn, R=a.R, rot=a.rot, trk=a.trk, q0sleep=a.q0sleep, exp=a.exp, RV=a.RV, lim=a.lim, pol=a.pol, leak=a.leak, fq=a.fq, fh=a.fh, wo2=a.wo2, b0first=not a.b0late, toff=a.toff, krate=a.krate, **ck))
```

```python
import sys, argparse
from asmlib import Asm
NAME = "recurrent_scan__gqa_block_cached__glu_gated_reglu__decode"

HEADER = open("cdna_kernels/" + NAME + ".s.ref").read().split("; Override launch")[0]

WS_QP = 0x0
WS_G1 = 0x90000
WS_F = 0x20000
WS_H2 = 0x40000
WS_E = 0x80000
WS_H1 = 0x100000
L_PRG = 0; L_MODE = 256; L_CNT = 264; L_ML = 384; L_Q = 512; L_TP = 1536; L_YR = 2048; L_OP = 4096; L_FP = 12288; L_SC = 16384; L_WO = 32768; L_FF = 65536; L_SIZE = 98304
WS_FAST = 0xE0000

def gen(stamps=False, mimic=True, thr=4, spin=1 << 16, sset=0, qsleep=0, psleep=0, noffn=False, R=16, rot=2, trk=2, q0sleep=0, exp='', RV=4, lim=-1, ctl=False, ctl_thr=(3, 2), ctl_d=(8, 24), ctl_int=32, ctl_t0=80, pol='nnn', leak='', fq=8, fh=16, wo2=7, b0first=True, toff=700, krate=57, ctl_tab=(9, 9, 4, 4, 0, 0, 0, 0), prothr=None):
    PK, PV, PW = [{'n': 'nt', 'd': ''}[c] for c in pol]
    A = Asm()
    nst = [0]
    def stamp(i, sets=None):
        if stamps and (sets is None or sset in sets): A(f"s_memrealtime s[{64+2*i}:{65+2*i}]")
    def vr(a, n): return f"v[{a}:{a+n-1}]"
    lab = [0]
    def newlab(p):
        lab[0] += 1; return f"L_{p}{lab[0]}"

    A(f"{NAME}_kernel:")
    stamp(0)
    A("s_cmp_ge_u32 s2, 256\ns_cbranch_scc1 L_exit")
    A("s_load_dwordx16 s[8:23], s[0:1], 0\ns_load_dwordx8 s[24:31], s[0:1], 64")
    A("v_lshrrev_b32 v4, 6, v0\nv_and_b32 v1, 63, v0\nv_mov_b32 v6, 0\nv_readfirstlane_b32 s3, v4\nv_mov_b32 v7, 0")
    A(f"ds_write_b64 v6, v[6:7] offset:{L_CNT}\nds_write_b64 v6, v[6:7] offset:{L_MODE}")
    A("ds_write_b64 v6, v[6:7]")
    A("s_and_b32 s32, s2, 7\ns_bfe_u32 s33, s2, 0x10003\ns_lshr_b32 s34, s2, 4\ns_lshl_b32 s35, s33, 3\ns_add_u32 s35, s35, s32")
    A("v_lshrrev_b32 v2, 4, v1\nv_and_b32 v3, 15, v1")
    A("s_mov_b32 s49, 0x05040100\ns_mov_b32 s50, 0x07060302\ns_mov_b32 s51, 0xffff0000\ns_mov_b32 s53, 0x3fb8aa3b")
    A("s_mov_b32 s39, 0x20000\ns_mov_b32 s43, 0x20000")
    A("s_cmp_gt_u32 s35, 11\ns_subb_u32 s54, s35, 0\ns_cmp_gt_u32 s35, 13\ns_subb_u32 s54, s54, 0")
    A("s_lshr_b32 s55, s34, 3\ns_sub_u32 s94, 2, s55\ns_add_u32 s55, s55, 2\ns_lshl_b32 s95, s54, s55\ns_and_b32 s55, s34, 7\ns_add_u32 s95, s95, s55")
    A("s_lshr_b32 s55, s34, 2\ns_cmp_eq_u32 s55, 1\ns_cselect_b32 s94, 0, s94\ns_bitcmp1_b32 0x2800, s35\ns_cselect_b32 s94, 0, s94")
    if noffn: A("s_mov_b32 s94, 0")
    A("s_and_b32 s4, s3, 3\ns_lshr_b32 s5, s34, 2\ns_and_b32 s6, s34, 3\ns_lshl_b32 s7, s5, 2\ns_add_u32 s7, s7, s4")
    A("s_cmp_ge_u32 s3, 4\ns_cbranch_scc1 L_aux")

    Q, P, M, Lr, S, TD, D, O, T, RING = 4, 8, 12, 13, 20, 28, 32, 48, 80, 112
    def RB(slot, u): return RING + 8 * slot + 4 * u
    A("s_lshl_b32 s54, s35, 4\ns_add_u32 s54, s54, s34")
    A(f"s_mul_i32 s44, s54, {rot * 8192}\ns_and_b32 s44, s44, 0x7ffff\ns_lshl_b32 s54, s54, 19")
    A("s_lshl_b32 s55, s3, 11")
    A("v_lshrrev_b32 v14, 2, v3\nv_lshlrev_b32 v14, 8, v14\nv_and_b32 v15, 3, v1\nv_lshlrev_b32 v15, 4, v15")
    A("v_lshl_add_u32 v14, v2, 6, v14\nv_add3_u32 v14, v14, v15, s55")
    A("s_mov_b32 s38, 0x80000")
    A("v_lshlrev_b32 v16, 4, v3\nv_lshl_add_u32 v17, v2, 11, v16")
    A("s_lshl_b32 s56, s6, 8\ns_lshl_b32 s45, s32, 4\ns_add_u32 s45, s45, s7\ns_lshl_b32 s45, s45, 15\ns_add_u32 s45, s45, s56")
    A(f"s_lshl_b32 s56, s33, 14\ns_add_u32 s45, s45, s56\ns_lshl_b32 s57, s4, 13\ns_lshl_b32 s56, s33, 12\ns_add_u32 s46, s57, s56\ns_add_u32 s46, s46, {L_WO}\ns_add_u32 s47, s57, {L_FF}")
    A("s_mov_b32 s82, 0x400000\ns_mov_b32 s83, 0x20000\ns_mov_b32 s90, 0x1c0000\ns_mov_b32 s91, 0x20000")
    A("s_and_b32 s56, s95, 3\ns_lshl_b32 s57, s56, 2\ns_add_u32 s57, s57, s4\ns_mul_i32 s92, s57, 0x1c000\ns_lshr_b32 s57, s95, 3\ns_lshl_b32 s57, s57, 8\ns_add_u32 s92, s92, s57")
    A("s_and_b32 s57, s95, 0xfc\ns_add_u32 s57, s57, s4\ns_lshl_b32 s57, s57, 15\ns_lshl_b32 s56, s56, 8\ns_add_u32 s57, s57, s56")
    A("s_movk_i32 s93, 0xe00\ns_cmp_eq_u32 s94, 2\ns_cselect_b32 s92, s57, s92\ns_cselect_b32 s93, 0x400, s93\ns_lshl_b32 s57, s93, 3\nv_mad_u32_u24 v18, v2, s57, v16")
    A("s_waitcnt lgkmcnt(0)")
    A("s_add_u32 s36, s10, s54\ns_addc_u32 s37, s11, 0\ns_and_b32 s37, s37, 0xffff")
    A("s_mov_b32 s80, s16\ns_and_b32 s81, s17, 0xffff")
    A("s_bitcmp0_b32 s95, 2\ns_cselect_b32 s88, s20, s22\ns_cselect_b32 s89, s21, s23\ns_cmp_eq_u32 s94, 2\ns_cselect_b32 s88, s24, s88\ns_cselect_b32 s89, s25, s89\ns_and_b32 s89, s89, 0xffff")
    def wo_half():
        for i in range(2):
            A(f"s_mov_b32 m0, s46\ns_waitcnt vmcnt({thr})")
            A(f"buffer_load_dwordx4 v17, s[80:83], s45 offen {PW} lds\nbuffer_load_dwordx4 v17, s[80:83], s45 offen offset:1024 {PW} lds")
            A("s_xor_b32 s45, s45, 0x2000\ns_xor_b32 s46, s46, 0x800")
        A("s_xor_b32 s45, s45, 0x4000\ns_xor_b32 s46, s46, 0x1000")
    if b0first: A("s_barrier")
    if 'O' not in exp: wo_half()
    if not b0first: A("s_barrier")
    A("s_cmp_eq_u32 s94, 0\ns_cbranch_scc1 L_nof")
    for i in range(8):
        A(f"s_mov_b32 m0, s47\ns_add_u32 s47, s47, 0x400")
        if i % 2 == 0: A(f"s_waitcnt vmcnt({thr})")
        A(f"buffer_load_dwordx4 v18, s[88:91], s92 offen {PW} lds\ns_add_u32 s92, s92, s93")
    A("L_nof:")
    def issue(slot, pol=None):
        for u in range(2):
            A(f"buffer_load_dwordx4 {vr(RB(slot,u),4)}, v14, s[36:39], s44 offen offset:{u*1024} {PK if pol is None else pol}")
        A("s_add_u32 s44, s44, 0x2000\ns_and_b32 s44, s44, 0x7ffff")
        if prog and ctl: A("s_add_u32 s57, s57, 4")
        if prog: A(f"ds_add_u32 v0, v15 offset:{L_PRG}")
    def throttle():
        if not ctl:
            A(f"s_waitcnt vmcnt({thr})"); return
        l_ = newlab("th"); c_ = A.counted
        A(f"s_waitcnt vmcnt({thr})\ns_cmp_eq_u32 s45, 0\ns_cbranch_scc1 {l_}")
        A.counted = False
        if len(ctl_thr) > 1: A(f"s_waitcnt vmcnt({ctl_thr[0]})\ns_cmp_eq_u32 s45, 1\ns_cbranch_scc1 {l_}")
        A(f"s_waitcnt vmcnt({ctl_thr[-1]})")
        A(f"{l_}:"); A.counted = c_
    prog = False
    if prothr is not None: A("s_cmp_eq_u32 s94, 0\ns_cselect_b64 vcc, 0, -1")
    for n in range(R):
        A(f"s_waitcnt vmcnt({thr})")
        if prothr is not None:
            l_ = newlab("pt"); A(f"s_cbranch_vccnz {l_}\ns_waitcnt vmcnt({prothr})\n{l_}:")
        issue(n)
        if n == wo2 and 'O' not in exp: wo_half()
        if n == R - 4:
            A("s_add_u32 s40, s12, s54\ns_addc_u32 s41, s13, 0\ns_and_b32 s41, s41, 0xffff")
            for i in range(32): A(f"v_mov_b32 v{O+i}, 0")
            A(f"v_mov_b32 v{M}, 0xff7fffff\nv_mov_b32 v{Lr}, 0")
            A("v_and_b32 v16, 3, v1\nv_lshlrev_b32 v16, 8, v16\nv_lshrrev_b32 v17, 2, v1\nv_lshl_add_u32 v16, v17, 4, v16")
            A(f"s_lshl_b32 s56, s3, 12\ns_add_u32 s56, s56, {L_SC}\nv_lshl_add_u32 v19, v2, 6, v15\nv_add_u32 v19, s56, v19")
            A("s_mov_b32 s52, 0x3db504f3\ns_mov_b32 s48, 0\ns_mov_b32 s46, 0x000f000f\ns_mov_b32 s47, 0x000f000f")
    stamp(1)
    A("s_barrier")
    A(f"ds_read_b128 {vr(Q,4)}, v16 offset:{L_Q}")
    A("s_waitcnt lgkmcnt(0)")
    stamp(2)
    NIT = 64 // R
    def dpp(k):
        d0 = D + 8 * (k & 1); d1 = d0 + 4
        A(f"v_add_f32_dpp v{TD}, v{d0+3}, v{d0+2} row_shl:4 row_mask:0xf bank_mask:0xf bound_ctrl:0")
        A(f"v_add_f32_dpp v{TD+1}, v{d1+3}, v{d1+2} row_shl:4 row_mask:0xf bank_mask:0xf bound_ctrl:0")
        A(f"v_add_f32_dpp v{TD+2}, v{d0+1}, v{d0} row_shl:4 row_mask:0xf bank_mask:0xf bound_ctrl:0")
        A(f"v_add_f32_dpp v{TD+3}, v{d1+1}, v{d1} row_shl:4 row_mask:0xf bank_mask:0xf bound_ctrl:0")
    def fin(k):
        A(f"v_add_f32_dpp v{S}, v{TD}, v{TD+2} row_shl:8 row_mask:0xf bank_mask:0xf bound_ctrl:0")
        A(f"v_add_f32_dpp v{S+1}, v{TD+1}, v{TD+3} row_shl:8 row_mask:0xf bank_mask:0xf bound_ctrl:0")
        A(f"v_cvt_pk_bf16_f32 v16, v{S}, v{S+1}\nv_lshlrev_b32 v{S}, 16, v16\nv_and_b32 v{S+1}, s51, v16")
        A(f"v_mul_f32 v{S}, s52, v{S}\nv_mul_f32 v{S+1}, s52, v{S+1}")
        A(f"v_cvt_pk_bf16_f32 v{P+(k&3)}, v{S}, v{S+1}\nv_max3_f32 v{M}, v{M}, v{S}, v{S+1}")
        if k & 3 == 3:
            A(f"s_mov_b64 exec, s[46:47]\nds_write_b128 v19, {vr(P,4)} offset:{256*(k>>2)}\ns_mov_b64 exec, -1")
    ST = R // RV
    A("s_mov_b64 vcc, 0\nv_mov_b32 v17, 0\nv_mov_b32 v15, 1\ns_mov_b32 s45, 0\ns_mov_b32 s57, 0\nv_lshlrev_b32 v0, 2, v1")
    def rdmode(): A(f"ds_read2st64_b32 v[240:241], v17 offset0:0 offset1:1\ns_mov_b32 s58, s57")
    def setmode():
        A(f"v_sub_u32 v240, v241, v240\nv_readfirstlane_b32 s59, v240\ns_add_u32 s59, s59, s58\ns_cmp_gt_i32 s59, {ctl_d[0]}\ns_cselect_b32 s45, 1, 0")
        if len(ctl_d) > 1: A(f"s_cmp_gt_i32 s59, {ctl_d[1]}\ns_cselect_b32 s45, 2, s45")
    prog = True
    A("L_kloop:")
    for k in range(R):
        d0 = D + 8 * (k & 1)
        if k > 0: dpp(k - 1)
        A(f"v_mfma_f32_16x16x32_bf16 {vr(d0,4)}, {vr(RB(k,0),4)}, {vr(Q,4)}, 0")
        A(f"v_mfma_f32_16x16x32_bf16 {vr(d0+4,4)}, {vr(RB(k,1),4)}, {vr(Q,4)}, 0")
        if k % ST != ST - 1:
            l1 = newlab("ks"); A(f"s_cbranch_vccnz {l1}"); A.counted = False
        throttle()
        issue(k)
        if k % ST != ST - 1:
            A(f"{l1}:"); A.counted = True
        if ctl and k & 1 == 0: rdmode()
        if ctl and k & 1 == 1: A("s_waitcnt lgkmcnt(0)"); setmode()
        if k > 0: fin(k - 1)
    dpp(R - 1); fin(R - 1)
    A(f"s_add_u32 s48, s48, 1\nv_add_u32 v19, {64*R}, v19")
    A(f"s_cmp_lt_u32 s48, {NIT-1}\ns_cbranch_scc1 L_kloop")
    A(f"s_cmp_eq_u32 s48, {NIT-1}\ns_cbranch_scc0 L_kdone")
    A("s_mov_b32 s36, s40\ns_mov_b32 s37, s41\nv_lshl_add_u32 v14, v1, 4, s55\ns_mov_b64 vcc, -1\ns_branch L_kloop")
    A("L_kdone:")
    A(f"v_cvt_pk_bf16_f32 v{M}, v{M}, v{M}\nv_and_b32 v{M}, s51, v{M}\nv_add_u32 v19, -4096, v19")
    A(f"v_mov_b32 v18, v{M}\nv_permlane32_swap_b32 v{M}, v18\nv_max_f32 v{M}, v{M}, v18\nv_mov_b32 v18, v{M}\nv_permlane16_swap_b32 v{M}, v18\nv_max_f32 v{M}, v{M}, v18")
    for n_ in (4, 8, 12): A(f"v_mov_b32_dpp v{M}, v{M} row_shr:{n_} row_mask:0xf bank_mask:{hex(1 << (n_ // 4))}")
    A(f"v_mul_f32 v{M}, s53, v{M}")
    A("s_mov_b32 s48, 0\ns_mov_b64 vcc, 0\ns_waitcnt lgkmcnt(0)")
    stamp(5, [3])
    assert thr <= 2 * (RV - 2)
    def VP(k): return ST * k + ST - 1
    def perms(k):
        t = k & 3
        for d in range(4):
            A(f"v_perm_b32 v{T+4*(2*d)+t}, v{RB(VP(k),1)+d}, v{RB(VP(k),0)+d}, s49")
            A(f"v_perm_b32 v{T+4*(2*d+1)+t}, v{RB(VP(k),1)+d}, v{RB(VP(k),0)+d}, s50")
    nfl = (thr + 3) // 2
    def tail(k):
        rem = RV - 1 - (k + 1)
        lastwait = 2 * rem if (0 <= rem < nfl) else None
        l1 = newlab("sk")
        A(f"s_cbranch_vccnz {l1}")
        A.counted = False
        throttle()
        issue(VP(k), PV)
        if lastwait is not None:
            l2 = newlab("jn")
            A(f"s_branch {l2}\n{l1}:\ns_waitcnt vmcnt({lastwait})\n{l2}:")
        else:
            A(f"{l1}:")
        A.counted = True
    A("L_vloop:")
    for k in range(RV):
        t = k & 3
        if t == 0:
            A(f"ds_read_b128 {vr(TD,4)}, v19 offset:{256*(k>>2)}")
            if ctl: rdmode()
            perms(k)
        elif t == 1:
            perms(k)
            A("s_waitcnt lgkmcnt(0)")
            if ctl: setmode()
            for i in range(4): A(f"v_lshlrev_b32 v{S+2*i}, 16, v{TD+i}\nv_and_b32 v{S+2*i+1}, s51, v{TD+i}")
            for i in range(8): A(f"v_fma_f32 v{S+i}, v{S+i}, s53, -v{M}")
            for i in range(8): A(f"v_exp_f32 v{S+i}, v{S+i}")
        elif t == 2:
            if ctl: rdmode()
            perms(k)
            for i in range(4): A(f"v_cvt_pk_bf16_f32 v{P+i}, v{S+2*i}, v{S+2*i+1}")
            A(f"v_pk_add_f32 {vr(S,2)}, {vr(S,2)}, {vr(S+2,2)}\nv_pk_add_f32 {vr(S+4,2)}, {vr(S+4,2)}, {vr(S+6,2)}")
            A(f"v_pk_add_f32 {vr(S,2)}, {vr(S,2)}, {vr(S+4,2)}\nv_add_f32 v{Lr}, v{Lr}, v{S}\nv_add_f32 v{Lr}, v{Lr}, v{S+1}")
        else:
            perms(k)
            for e in range(8):
                A(f"v_mfma_f32_16x16x32_bf16 {vr(O+4*e,4)}, {vr(T+4*e,4)}, {vr(P,4)}, {vr(O+4*e,4)}")
            if ctl: A("s_waitcnt lgkmcnt(0)"); setmode()
        tail(k)
    A(f"v_add_u32 v19, {64*RV}, v19")
    A(f"s_add_u32 s48, s48, 1\ns_cmp_eq_u32 s48, {64//RV-1}\ns_cselect_b64 vcc, -1, 0\ns_cmp_lt_u32 s48, {64//RV}\ns_cbranch_scc1 L_vloop")
    stamp(3)
    A(f"v_mov_b32 v18, v{Lr}\nv_lshlrev_b32 v16, 9, v3\nv_lshl_add_u32 v16, v2, 7, v16\nv_permlane32_swap_b32 v{Lr}, v18\nv_add_f32 v{Lr}, v{Lr}, v18")
    A(f"v_mov_b32 v18, v{Lr}\nv_add_u32 v16, s55, v16\ns_lshl_b32 s56, s3, 3\nv_lshlrev_b32 v17, 5, v3\nv_permlane16_swap_b32 v{Lr}, v18\nv_add_f32 v{Lr}, v{Lr}, v18")
    A("v_add_u32 v17, s56, v17")
    A("s_mov_b32 exec_lo, 0x000f000f\ns_mov_b32 exec_hi, 0x000f000f")
    for e in range(8): A(f"ds_write_b128 v16, {vr(O+4*e,4)} offset:{L_OP+16*e}")
    A(f"ds_write_b64 v17, {vr(M,2)} offset:{L_ML}")
    A("s_waitcnt lgkmcnt(0)")
    A("s_barrier")
    if stamps:
        stamp(4); stamp(5, [0, 1, 2]); stamp(6); A("s_branch L_stamps")
    else:
        A("s_endpgm")

    XA, XB, AO, WQ, WO, T, D, WT, UP, U = 8, 16, 20, 32, 64, 96, 128, 160, 192, 224
    TAG = "s46"; FAR = "s45"; XCC = "s44"
    def publish(name, stores, cond):
        A(f"s_cmp_lg_u32 {cond}, 0\ns_cbranch_scc1 L_{name}x")
        for t_ in stores: A(t_)
        A(f"s_branch L_{name}y\nL_{name}x:")
        for t_ in stores: A(t_ + " sc1")
        A(f"L_{name}y:")
    A("L_aux:")
    A("s_setprio 3")
    A("v_lshlrev_b32 v4, 5, v1")
    A("v_lshrrev_b32 v24, 3, v3\nv_lshl_add_u32 v24, v24, 2, v2\nv_and_b32 v25, 7, v1")
    A("s_and_b32 s56, s34, 1\ns_lshl_b32 s57, s56, 2\ns_add_u32 s57, s57, s4")
    A("s_lshl_b32 s54, s33, 10\ns_lshl_b32 s55, s57, 7\ns_add_u32 s54, s54, s55\nv_lshl_add_u32 v5, v24, 4, s54")
    A("v_lshlrev_b32 v25, 4, v25\nv_lshl_add_u32 v6, v24, 16, v25")
    A("s_lshl_b32 s44, s57, 19\ns_lshl_b32 s55, s32, 10\ns_add_u32 s44, s44, s55\ns_lshr_b32 s57, s34, 1\ns_lshl_b32 s55, s57, 7\ns_add_u32 s44, s44, s55")
    A("s_mov_b32 s38, 0x400000")
    A("s_waitcnt lgkmcnt(0)")
    A(f"global_load_dwordx4 {vr(XA,4)}, v4, s[8:9]\nglobal_load_dwordx4 {vr(XA+4,4)}, v4, s[8:9] offset:16\nglobal_load_dwordx4 {vr(XB,4)}, v5, s[8:9]")
    A("s_mov_b32 s36, s14\ns_and_b32 s37, s15, 0xffff")
    for s in range(8):
        if 'W' not in exp: A(f"buffer_load_dwordx4 {vr(WQ+4*s,4)}, v6, s[36:39], s44 offen {PW}")
        if s < 7: A("s_add_u32 s44, s44, 0x2000")
    A(f"s_load_dword s47, s[30:31], {WS_E}")
    if ctl:
        A(f"s_lshr_b32 s98, s2, 3\ns_mul_i32 s98, s98, 4352\ns_add_u32 s98, s98, 0x200000")
        A("s_lshl_b32 s54, s32, 2\ns_add_u32 s54, s54, s4\ns_cmp_eq_u32 s54, 3\ns_cbranch_scc0 L_norst\ns_mov_b32 s99, 0\ns_atomic_swap s99, s[30:31], s98\nL_norst:")
    A("s_barrier")
    A(f"s_lshl_b32 s54, s4, 9\ns_add_u32 s54, s54, {L_YR}\nv_lshl_add_u32 v29, v3, 5, s54")
    A("v_lshlrev_b32 v28, 3, v1")
    A(f"v_and_b32 v{WT+1}, 1, v1\nv_lshlrev_b32 v{WT+1}, 10, v{WT+1}\nv_lshl_add_u32 v{WT+1}, v2, 4, v{WT+1}")
    A(f"s_and_b32 s54, s95, 3\ns_lshl_b32 s54, s54, 2\ns_add_u32 s54, s54, s4\ns_lshl_b32 s54, s54, 6\nv_add_u32 v{WT+1}, s54, v{WT+1}")
    A(f"s_cmp_eq_u32 s94, 2\ns_cselect_b32 s59, {WS_F}, 0\ns_cselect_b32 s54, 0, {WS_G1}\ns_add_u32 s59, s59, s54\ns_lshl_b32 s54, s95, 11\ns_add_u32 s59, s59, s54")
    A(f"s_add_u32 s96, s30, {WS_FAST}\ns_addc_u32 s97, s31, 0\ns_getreg_b32 {XCC}, hwreg(HW_REG_XCC_ID, 0, 4)")
    A("s_waitcnt vmcnt(9)")
    stamp(1, [0])
    for d in range(8):
        A(f"v_lshlrev_b32 v{U+2*d}, 16, v{XA+d}\nv_and_b32 v{U+2*d+1}, s51, v{XA+d}")
    def allred32(r, t):
        for n_ in (8, 4, 2, 1): A(f"v_add_f32_dpp v{r}, v{r}, v{r} row_ror:{n_} row_mask:0xf bank_mask:0xf")
        A(f"v_mov_b32 v{t}, v{r}\nv_permlane16_swap_b32 v{r}, v{t}\nv_add_f32 v{r}, v{r}, v{t}")
    for d in range(4): A(f"v_pk_add_f32 {vr(XA+2*d,2)}, {vr(U+4*d,2)}, {vr(U+4*d+2,2)}")
    A(f"v_pk_add_f32 {vr(XA,2)}, {vr(XA,2)}, {vr(XA+2,2)}\nv_pk_add_f32 {vr(XA+4,2)}, {vr(XA+4,2)}, {vr(XA+6,2)}")
    A(f"v_pk_add_f32 {vr(XA,2)}, {vr(XA,2)}, {vr(XA+4,2)}\nv_add_f32 v24, v{XA}, v{XA+1}")
    allred32(24, 25)
    A("v_mul_f32 v24, 0x3b000000, v24")
    for d in range(16): A(f"v_sub_f32 v{U+d}, v{U+d}, v24")
    A(f"v_mul_f32 v26, v{U}, v{U}\nv_mul_f32 v27, v{U+1}, v{U+1}")
    for d in range(2, 16): A(f"v_fmac_f32 v{26+(d&1)}, v{U+d}, v{U+d}")
    A("v_add_f32 v26, v26, v27")
    allred32(26, 25)
    A("v_mul_f32 v26, 0x3b000000, v26")
    A("v_cvt_pk_bf16_f32 v24, v24, v26\nv_and_b32 v26, s51, v24\nv_lshlrev_b32 v24, 16, v24")
    A("v_add_f32 v26, 0x3727c5ac, v26\nv_cvt_pk_bf16_f32 v26, v26, v26\nv_and_b32 v26, s51, v26")
    A("v_sqrt_f32 v26, v26\nv_cvt_pk_bf16_f32 v26, v26, v26\nv_and_b32 v26, s51, v26\nv_rcp_f32 v26, v26")
    A("v_readlane_b32 s60, v24, 0\nv_readlane_b32 s62, v24, 32\nv_readlane_b32 s61, v26, 0\nv_readlane_b32 s63, v26, 32")
    A("s_cmp_eq_u32 s33, 0\ns_cselect_b32 s54, s60, s62\ns_cselect_b32 s55, s61, s63")
    A("v_mov_b32 v30, s54\nv_mov_b32 v31, s55")
    def normalize(src, dst):
        for d in range(4): A(f"v_lshlrev_b32 v{U+2*d}, 16, v{src+d}\nv_and_b32 v{U+2*d+1}, s51, v{src+d}")
        for d in range(8): A(f"v_sub_f32 v{U+d}, v{U+d}, v30")
        for d in range(4): A(f"v_cvt_pk_bf16_f32 v{dst+d}, v{U+2*d}, v{U+2*d+1}")
        for d in range(4): A(f"v_lshlrev_b32 v{U+2*d}, 16, v{dst+d}\nv_and_b32 v{U+2*d+1}, s51, v{dst+d}")
        for d in range(8): A(f"v_mul_f32 v{U+d}, v{U+d}, v31")
        for d in range(4): A(f"v_cvt_pk_bf16_f32 v{dst+d}, v{U+2*d}, v{U+2*d+1}")
    def permtile(src, dst):
        for d in range(4):
            for t in range(4):
                A(f"v_perm_b32 v{dst+4*(2*d)+t}, v{src+4*(2*t+1)+d}, v{src+4*(2*t)+d}, s49")
            for t in range(4):
                A(f"v_perm_b32 v{dst+4*(2*d+1)+t}, v{src+4*(2*t+1)+d}, v{src+4*(2*t)+d}, s50")
    def mfmatile(acc, a, w, zero):
        for e in range(8):
            A(f"v_mfma_f32_16x16x32_bf16 {vr(acc+4*e,4)}, {vr(a,4)}, {vr(w+4*e,4)}, {'0' if zero else vr(acc+4*e,4)}")
    def row0_write(addr, acc, r, off):
        for e in range(0, 8, 2):
            A(f"ds_write2_b32 v{addr}, v{acc+4*e+r}, v{acc+4*(e+1)+r} offset0:{off//4+e} offset1:{off//4+e+1}")
    def poll(name, loads, sleep=0, masks=None, fast=0):
        A(f"s_mov_b32 s58, {spin}")
        for i in range(len(loads)):
            m = masks[i] if masks else -1
            if m == -1: A(f"s_mov_b64 s[{80+2*i}:{81+2*i}], -1")
            else: A(f"s_mov_b32 s{80+2*i}, {hex(m & 0xffffffff)}\ns_mov_b32 s{81+2*i}, {hex(m >> 32)}")
        A(f"L_{name}:")
        def rnd_(tag_, conv):
            for i, (l_, r) in enumerate(loads):
                A(f"s_mov_b64 exec, s[{80+2*i}:{81+2*i}]")
                if len(loads) > 1:
                    A(f"s_cbranch_execz L_{name}{tag_}{i}"); A.counted = False; A(conv(l_)); A.counted = True; A(f"L_{name}{tag_}{i}:")
                else: A(conv(l_))
        if fast == "near":
            A(f"s_cmp_lg_u32 {FAR}, 0\ns_cbranch_scc1 L_{name}x")
            rnd_("f", lambda t_: t_.replace(" sc1", " nt"))
            A(f"s_branch L_{name}y\nL_{name}x:")
        elif fast:
            A(f"s_and_b32 s54, s58, {fast-1}\ns_cmp_eq_u32 s54, 1\ns_cbranch_scc1 L_{name}x")
            rnd_("f", lambda t_: t_.replace("s[30:31]", "s[96:97]").replace(" sc1", " nt"))
            A(f"s_branch L_{name}y\nL_{name}x:")
        rnd_("s", lambda t_: t_)
        if fast: A(f"L_{name}y:")
        A("s_waitcnt vmcnt(0)")
        for i, (l_, r) in enumerate(loads):
            if len(loads) > 1: A(f"s_mov_b64 exec, s[{80+2*i}:{81+2*i}]")
            A(f"v_cmp_ne_u32 s[{80+2*i}:{81+2*i}], {TAG}, v{r}")
        A("s_mov_b64 exec, -1")
        if len(loads) == 1: A("s_or_b64 vcc, s[80:81], s[80:81]")
        else:
            A("s_or_b64 vcc, s[80:81], s[82:83]")
            for i in range(2, len(loads)): A(f"s_or_b64 vcc, vcc, s[{80+2*i}:{81+2*i}]")
        A(f"s_cbranch_scc0 L_{name}d")
        if sleep: A(f"s_sleep {sleep}")
        A(f"s_sub_u32 s58, s58, 1\ns_cbranch_scc0 L_{name}")
        A(f"L_{name}d:")
    def trickle(loads):
        n_ = 0
        for l_ in loads:
            if l_.startswith(("buffer_load", "global_load")):
                if n_ and n_ % trk == 0: A("s_waitcnt vmcnt(0)")
                n_ += 1
            A(l_)
    A("s_waitcnt vmcnt(8)")
    normalize(XB, AO)
    A("s_waitcnt vmcnt(0)")
    stamp(2, [0]); stamp(1, [1])
    permtile(WQ, T)
    mfmatile(D, AO, T, True)
    def xrow(regs, t):
        for i, r in enumerate(regs): A(f"v_mov_b32 v{t+i}, v{r}")
        for i, r in enumerate(regs): A(f"v_permlane32_swap_b32 v{r}, v{t+i}")
        for i, r in enumerate(regs): A(f"v_add_f32 v{r}, v{r}, v{t+i}")
        for i, r in enumerate(regs): A(f"v_mov_b32 v{t+i}, v{r}")
        for i, r in enumerate(regs): A(f"v_permlane16_swap_b32 v{r}, v{t+i}")
        for i, r in enumerate(regs): A(f"v_add_f32 v{r}, v{r}, v{t+i}")
    A("v_mov_b32 v24, 0\nv_mov_b32 v25, 1")
    A("s_lshl_b32 s54, s35, 13\ns_lshl_b32 s55, s56, 12\ns_add_u32 s55, s55, s54\ns_lshl_b32 s57, s57, 9\ns_add_u32 s55, s55, s57\nv_lshl_add_u32 v26, v1, 4, s55")
    A("s_lshl_b32 s55, s4, 10\ns_add_u32 s55, s55, s54\ns_add_u32 s55, s55, 0x1000\nv_lshl_add_u32 v4, v1, 4, s55")
    A("s_mov_b32 exec_lo, 0xff\ns_mov_b32 exec_hi, 0xff00")
    row0_write(29, D, 0, 0)
    A("s_mov_b64 exec, 1")
    A("s_waitcnt lgkmcnt(0)")
    A(f"ds_add_rtn_u32 v27, v24, v25 offset:{L_CNT}")
    A(f"s_add_u32 {TAG}, s47, 0x9e3779b9")
    A("s_waitcnt lgkmcnt(0)")
    stamp(2, [1]); stamp(3, [1])
    A("v_readfirstlane_b32 s54, v27\ns_mov_b64 exec, -1\ns_cmp_eq_u32 s54, 3\ns_cbranch_scc0 L_qwait")
    for i in range(4): A(f"ds_read_b64 {vr(XA+2*i,2)}, v28 offset:{L_YR+512*i}")
    A("s_waitcnt lgkmcnt(0)")
    A(f"v_pk_add_f32 {vr(XA,2)}, {vr(XA,2)}, {vr(XA+2,2)}\nv_pk_add_f32 {vr(XA+4,2)}, {vr(XA+4,2)}, {vr(XA+6,2)}\nv_pk_add_f32 {vr(XA,2)}, {vr(XA,2)}, {vr(XA+4,2)}")
    A(f"v_mov_b32 v{XA+4}, v{XA}\nv_mov_b32 v{XA+5}, v{XA+1}\nv_mov_b32 v{XA+2}, {TAG}\nv_mov_b32 v{XA+3}, {XCC}\nv_permlane32_swap_b32 v{XA}, v{XA+4}\nv_permlane32_swap_b32 v{XA+1}, v{XA+5}")
    A(f"v_pk_add_f32 {vr(XA,2)}, {vr(XA,2)}, {vr(XA+4,2)}")
    A("s_mov_b32 exec_hi, 0")
    if fq: A(f"global_store_dwordx4 v26, {vr(XA,4)}, s[96:97]")
    A(f"global_store_dwordx4 v26, {vr(XA,4)}, s[30:31] sc1\ns_mov_b32 exec_hi, -1")
    stamp(3, [1])
    def ldswait(name, off, val, sleep):
        A(f"s_mov_b32 s58, {spin}\nv_mov_b32 v24, 0")
        A(f"L_{name}:")
        A(f"ds_read_b32 v27, v24 offset:{off}\ns_waitcnt lgkmcnt(0)\nv_cmp_gt_u32 vcc, {val}, v27\ns_cbranch_vccz L_{name}d")
        A(f"s_sleep {sleep}\ns_sub_u32 s58, s58, 1\ns_cbranch_scc0 L_{name}")
        A(f"L_{name}d:")
    A("L_qwait:")
    if q0sleep: A(f"s_sleep {q0sleep}")
    if 'w' in exp: A("s_waitcnt vmcnt(0)")
    if 'Q' not in exp: poll("pq", [(f"global_load_dwordx4 {vr(WQ+4*i,4)}, v4, s[30:31] offset:{-4096 if i == 0 else 0} sc1", WQ + 4 * i + 2) for i in range(2)], qsleep, None, fq)
    else: A("s_waitcnt vmcnt(0)")
    stamp(4, [1])
    A(f"s_lshl_b32 s54, s4, 8\nv_lshl_add_u32 v4, v1, 2, s54\nv_pk_add_f32 {vr(WQ,2)}, {vr(WQ,2)}, {vr(WQ+4,2)}\nv_cvt_pk_bf16_f32 v{WQ}, v{WQ}, v{WQ+1}")
    A(f"ds_write_b32 v4, v{WQ} offset:{L_Q}")
    A(f"v_xor_b32 v5, {XCC}, v{WQ+3}\nv_bitop3_b32 v5, v5, v{WQ+7}, {XCC} bitop3:0xf6\nv_mov_b32 v24, 0")
    if 'R' in exp: A("v_mov_b32 v5, 1")
    A(f"v_cmp_ne_u32 vcc, 0, v5\ns_mov_b64 exec, vcc\ns_cbranch_execz L_near\nds_write_b32 v24, v5 offset:{L_MODE+4}\nL_near:\ns_mov_b64 exec, -1")
    A("s_waitcnt lgkmcnt(0)")
    stamp(5, [1])
    A("s_barrier")
    stamp(3, [0]); stamp(1, [2])
    A(f"s_setprio 0\nglobal_load_dwordx4 {vr(XB,4)}, v{WT+1}, s[8:9]")
    A(f"s_lshl_b32 s54, s4, 13\ns_add_u32 s54, s54, {L_WO}\nv_lshl_add_u32 v4, v1, 4, s54")
    for s in range(8): A(f"ds_read_b128 {vr(WO+4*s,4)}, v4 offset:{(s&3)*2048+(s>>2)*1024}")
    for s in range(8): A(f"ds_read_b128 {vr(UP+4*s,4)}, v4 offset:{L_FF-L_WO+s*1024}")
    A(f"ds_read_b32 v5, v24 offset:{L_MODE+4}\ns_waitcnt lgkmcnt(0)\nv_readfirstlane_b32 {FAR}, v5")
    permtile(WO, WT)
    A("s_waitcnt vmcnt(0)")
    A("v_and_b32 v4, 1, v1\ns_cmp_eq_u32 s94, 0\ns_cbranch_scc1 L_w1\ns_cmp_eq_u32 s94, 2\ns_cbranch_scc1 L_down")
    A("v_cmp_eq_u32 vcc, 1, v4\nv_mov_b32 v30, s60\nv_mov_b32 v31, s62\nv_mov_b32 v5, s61\nv_mov_b32 v6, s63")
    A("v_cndmask_b32 v30, v30, v31, vcc\nv_cndmask_b32 v31, v5, v6, vcc")
    normalize(XB, AO)
    A("s_branch L_ftile")
    A("L_down:")
    ldswait("wd", L_PRG, 48, 8)
    A(f"s_lshr_b32 s54, s95, 2\ns_lshl_b32 s54, s54, 14\ns_lshl_b32 s55, s4, 9\ns_add_u32 s54, s54, s55\ns_add_u32 s54, s54, {WS_G1+4096}")
    A("v_lshrrev_b32 v5, 5, v1\nv_lshlrev_b32 v5, 13, v5\nv_and_b32 v6, 31, v1\nv_lshl_add_u32 v5, v6, 4, v5\nv_add_u32 v5, s54, v5")
    if 'G' not in exp: poll("pg", [(f"global_load_dwordx4 {vr(D+4*i,4)}, v5, s[30:31] offset:{2048*i-4096} sc1", D + 4 * i + 2) for i in range(4)], 32, None, 'near')
    A(f"v_pk_add_f32 {vr(D,2)}, {vr(D,2)}, {vr(D+4,2)}\nv_pk_add_f32 {vr(D+8,2)}, {vr(D+8,2)}, {vr(D+12,2)}\nv_pk_add_f32 {vr(D,2)}, {vr(D,2)}, {vr(D+8,2)}")
    A(f"v_permlane32_swap_b32 v{D}, v{D+1}\nv_cvt_pk_bf16_f32 v24, v{D}, v{D+1}\nv_lshlrev_b32 v25, 16, v24\nv_and_b32 v24, s51, v24")
    A("v_max_f32 v25, 0, v25\nv_mul_f32 v24, v24, v25\nv_cvt_pk_bf16_f32 v24, v24, v24")
    A(f"s_lshl_b32 s54, s4, 7\ns_add_u32 s54, s54, {L_TP}\nv_lshl_add_u32 v5, v1, 1, s54\nv_lshl_add_u32 v6, v4, 6, s54\nv_lshl_add_u32 v6, v2, 4, v6")
    A(f"ds_write_b16 v5, v24\ns_waitcnt lgkmcnt(0)\nds_read_b128 {vr(AO,4)}, v6\ns_waitcnt lgkmcnt(0)")
    A("L_ftile:")
    permtile(UP, T); mfmatile(D, AO, T, True)
    A(f"v_add_u32 v5, {L_FP-L_YR}, v29\nv_add_u32 v6, {L_FP-L_YR+2048}, v29\nv_mov_b32 v24, 0\nv_mov_b32 v25, 1")
    A("s_mov_b64 exec, 0xffff")
    row0_write(5, D, 0, 0); row0_write(6, D, 1, 0)
    A("s_mov_b64 exec, 1\ns_waitcnt lgkmcnt(0)")
    A(f"ds_add_rtn_u32 v27, v24, v25 offset:{L_CNT+4}\ns_waitcnt lgkmcnt(0)")
    A("v_readfirstlane_b32 s54, v27\ns_mov_b64 exec, -1\ns_cmp_eq_u32 s54, 3\ns_cbranch_scc0 L_w1")
    A(f"v_lshlrev_b32 v5, 2, v1\nv_add_u32 v5, {L_FP}, v5")
    for hf in range(2):
        for i in range(4): A(f"ds_read2st64_b32 {vr(WQ+8*hf+2*i,2)}, v5 offset0:{2*i+hf} offset1:{8+2*i+hf}")
    A("v_lshl_add_u32 v5, v1, 4, s59\ns_waitcnt lgkmcnt(0)")
    for hf in range(2):
        r = WQ + 8 * hf
        A(f"v_pk_add_f32 {vr(r,2)}, {vr(r,2)}, {vr(r+2,2)}\nv_pk_add_f32 {vr(r+4,2)}, {vr(r+4,2)}, {vr(r+6,2)}\nv_pk_add_f32 {vr(r,2)}, {vr(r,2)}, {vr(r+4,2)}\nv_mov_b32 v{r+2}, {TAG}")
    A(f"s_lshr_b32 s54, s94, 1\ns_or_b32 s54, s54, {FAR}")
    if 'S' not in exp: publish("sf", [f"global_store_dwordx4 v5, {vr(WQ,4)}, s[30:31]", f"global_store_dwordx4 v5, {vr(WQ+8,4)}, s[30:31] offset:1024"], "s54")
    def rbf(r): A(f"v_cvt_pk_bf16_f32 v{r}, v{r}, v{r}\nv_and_b32 v{r}, s51, v{r}")
    G, XV, OA, H2A = 224, 225, 226, 227
    A("L_w1:")
    if ctl:
        WS_CM = 0x228000
        A("s_cmp_eq_u32 s4, 3\ns_cbranch_scc0 L_noctl")
        if 'X' in exp: A("s_branch L_noctl")
        A(f"s_lshr_b32 s56, s2, 3\ns_sub_u32 s56, 31, s56\ns_mul_i32 s56, s56, {ctl_int}\ns_add_u32 s56, s56, {ctl_t0}")
        A(f"s_mul_i32 s54, s32, 4352\ns_add_u32 s54, s54, {WS_CM}\nv_mov_b32 v5, s54\nv_mov_b32 v24, 0\ns_mov_b32 s58, {spin}\ns_mov_b64 exec, 1")
        A("L_ctl:")
        A("global_load_dword v12, v5, s[30:31] nt\ns_mov_b32 s48, 6")
        A("L_ct1:")
        A(f"ds_read_b32 v27, v24 offset:{L_PRG}\ns_waitcnt lgkmcnt(0)\nv_readfirstlane_b32 s57, v27\ns_cmp_lt_u32 s57, s56\ns_cbranch_scc1 L_ct2")
        A("s_mov_b32 s54, 1\ns_atomic_add s54, s[30:31], s98 glc\ns_mov_b32 s56, -1\ns_waitcnt lgkmcnt(0)")
        A(f"s_min_u32 s54, s54, 7\ns_lshl_b32 s54, s54, 2\ns_lshr_b32 s54, {hex(sum(v << (4*i) for i, v in enumerate(ctl_tab)))}, s54\ns_and_b32 s54, s54, 15\ns_add_u32 s54, s54, {TAG}")
        A("v_mov_b32 v13, s54\nglobal_store_dword v5, v13, s[30:31]")
        A("L_ct2:")
        A("s_sleep 2\ns_sub_u32 s48, s48, 1\ns_cbranch_scc0 L_ct1")
        A(f"s_waitcnt vmcnt(0)\nv_subrev_u32 v12, {TAG}, v12\nv_cmp_gt_u32 vcc, 16, v12\nv_cndmask_b32 v12, 0, v12, vcc\nds_write_b32 v24, v12 offset:{L_MODE}")
        A("s_sub_u32 s58, s58, 1\ns_cbranch_scc1 L_ctle\ns_cmp_lt_u32 s57, 420\ns_cbranch_scc1 L_ctl")
        A("L_ctle:\ns_mov_b64 exec, -1")
        A("L_noctl:")
    A("s_cmp_eq_u32 s4, 1\ns_cbranch_scc0 L_tail\ns_cmp_lt_u32 s2, 128\ns_cbranch_scc0 L_tail")
    A("s_lshr_b32 s56, s2, 6\ns_and_b32 s57, s2, 63")
    A("v_and_b32 v4, 3, v1\nv_lshrrev_b32 v5, 2, v1\nv_lshlrev_b32 v5, 12, v5\nv_lshl_add_u32 v5, v4, 4, v5")
    A(f"s_lshl_b32 s54, s57, 6\ns_lshl_b32 s55, s56, 17\ns_add_u32 s55, s55, s54\ns_add_u32 s55, s55, {WS_H2}\nv_add_u32 v{H2A}, s55, v5\nv_add_u32 v{H2A+1}, 0x10000, v{H2A}")
    A("v_lshrrev_b32 v6, 5, v1\nv_lshl_add_u32 v6, v4, 1, v6")
    A(f"s_lshl_b32 s54, s2, 4\nv_lshl_add_u32 v{OA}, v6, 1, s54\nv_lshlrev_b32 v6, 2, v6")
    A(f"global_load_ushort v{XV}, v{OA}, s[8:9]")
    A(f"s_lshl_b32 s54, s57, 7\ns_add_u32 s54, s54, {WS_F}\nv_lshrrev_b32 v5, 3, v1\nv_lshlrev_b32 v5, 13, v5\nv_and_b32 v7, 7, v1\nv_lshl_add_u32 v5, v7, 4, v5\nv_add_u32 v5, s54, v5\nv_add_u32 v7, 0x10000, v5")
    A(f"v_mov_b32 v20, 0\nv_mov_b32 v21, 0")
    if noffn or 'F' in exp: A("s_branch L_tail")
    ldswait("wf", L_PRG, 160, 16)
    poll("pf", [("global_load_dwordx4 v[16:19], v5, s[30:31] sc1", 18), ("global_load_dwordx4 v[20:23], v7, s[30:31] sc1", 22)], 64, [-1, (1 << 48) - 1])
    A("v_pk_add_f32 v[16:17], v[16:17], v[20:21]")
    A("s_cmp_eq_u32 s56, 0\ns_cselect_b64 vcc, 0, -1\nv_cndmask_b32 v8, v16, v17, vcc")
    A("v_add_f32_dpp v8, v8, v8 row_ror:8 row_mask:0xf bank_mask:0xf")
    xrow([8], 9)
    rbf(8)
    A(f"v_mul_f32 v9, s53, v8\nv_exp_f32 v9, -v9\nv_add_f32 v9, 1.0, v9\nv_rcp_f32 v9, v9\nv_mul_f32 v8, v8, v9")
    rbf(8)
    A(f"ds_bpermute_b32 v{G}, v6, v8\nv_lshlrev_b32 v{XV}, 16, v{XV}")
    A("L_tail:")
    A(f"s_lshl_b32 s54, s4, 9\nv_add_u32 v4, s54, v28\ns_lshl_b32 s55, s4, 5\nv_mov_b32 v5, s55")
    A(f"s_lshl_b32 s56, s35, 16\ns_add_u32 s56, s56, {WS_H1}\ns_lshl_b32 s57, s4, 14\ns_add_u32 s57, s57, s56\ns_lshl_b32 s58, s34, 8\ns_add_u32 s57, s57, s58")
    A("v_lshlrev_b32 v6, 12, v2\nv_lshl_add_u32 v6, v3, 4, v6\nv_add_u32 v6, s57, v6")
    A("s_lshl_b32 s58, s7, 12\ns_add_u32 s56, s56, s58\nv_lshl_add_u32 v26, v1, 4, s56\nv_lshl_add_u32 v27, v1, 8, s56")
    A(f"s_lshl_b32 s56, s35, 2\ns_add_u32 s56, s56, s5\ns_lshl_b32 s56, s56, 12\ns_lshl_b32 s57, s6, 10\ns_add_u32 s56, s56, s57\ns_add_u32 s56, s56, {WS_H2}\nv_lshl_add_u32 v25, v1, 4, s56")
    A(f"v_mov_b32 v50, {TAG}")
    A("s_waitcnt vmcnt(0) lgkmcnt(0)")
    stamp(2, [2])
    A("s_barrier")
    stamp(4, [0]); stamp(3, [2])
    A(f"ds_read_b128 v[40:43], v5 offset:{L_ML}\nds_read_b128 v[44:47], v5 offset:{L_ML+16}")
    for i in range(4): A(f"ds_read_b64 {vr(32+2*i,2)}, v4 offset:{L_OP+2048*i}")
    A("s_waitcnt lgkmcnt(0)" if stamps else "s_waitcnt lgkmcnt(4)")
    A("v_max3_f32 v51, v40, v42, v44\nv_max_f32 v51, v51, v46")
    for i in range(4): A(f"v_sub_f32 v{40+2*i}, v{40+2*i}, v51")
    for i in range(4): A(f"v_exp_f32 v{40+2*i}, v{40+2*i}")
    A("v_mul_f32 v41, v40, v41")
    for i in range(1, 4): A(f"v_fmac_f32 v41, v{40+2*i}, v{41+2*i}")
    A("v_rcp_f32 v52, v41\nv_log_f32 v53, v41")
    A("s_waitcnt lgkmcnt(0)")
    A("v_pk_mul_f32 v[48:49], v[32:33], v[40:41] op_sel_hi:[1,0]")
    for i in range(1, 4): A(f"v_pk_fma_f32 v[48:49], {vr(32+2*i,2)}, {vr(40+2*i,2)}, v[48:49] op_sel_hi:[1,0,1]")
    A("v_add_f32 v51, v51, v53\nv_pk_mul_f32 v[48:49], v[48:49], v[52:53] op_sel_hi:[1,0]")
    publish("sh", ["global_store_dwordx4 v6, v[48:51], s[30:31]"], FAR)
    if lim >= 0:
        A("s_cmp_eq_u32 s4, 0\ns_cbranch_scc0 L_lpd")
        A(f"s_mov_b32 s58, {spin}\ns_mov_b64 exec, 0xffff")
        A("L_lp:")
        A(f"global_load_dword v12, v27, s[30:31] offset:8 sc1\ns_waitcnt vmcnt(0)\nv_cmp_ne_u32 vcc, {TAG}, v12\ns_mov_b64 exec, vcc\ns_bcnt1_i32_b64 s54, vcc")
        A(f"s_cmp_le_u32 s54, {lim}\ns_cbranch_scc1 L_lpe\ns_sub_u32 s58, s58, 1\ns_cbranch_scc0 L_lp")
        A("L_lpe:\ns_mov_b64 exec, -1\nL_lpd:\ns_barrier")
    poll("p1", [(f"global_load_dwordx4 {vr(64+4*i,4)}, v26, s[30:31] offset:{1024*i} sc1", 64 + 4 * i + 2) for i in range(4)], psleep, None, 'near')
    stamp(5, [0]); stamp(4, [2])
    A("v_max3_f32 v62, v67, v71, v75\nv_max_f32 v62, v62, v79")
    A("v_mov_b32 v63, v62\nv_permlane32_swap_b32 v62, v63\nv_max_f32 v62, v62, v63\nv_mov_b32 v63, v62\nv_permlane16_swap_b32 v62, v63\nv_max_f32 v62, v62, v63")
    for i in range(4): A(f"v_sub_f32 v{66+4*i}, v{67+4*i}, v62")
    for i in range(4): A(f"v_exp_f32 v{66+4*i}, v{66+4*i}")
    A("v_pk_mul_f32 v[52:53], v[64:65], v[66:67] op_sel_hi:[1,0]\nv_add_f32 v54, v66, v70")
    for i in range(1, 4): A(f"v_pk_fma_f32 v[52:53], {vr(64+4*i,2)}, {vr(66+4*i,2)}, v[52:53] op_sel_hi:[1,0,1]")
    A("v_add_f32 v55, v74, v78\nv_add_f32 v54, v54, v55")
    xrow([54, 52, 53], 56)
    A("v_rcp_f32 v54, v54\nv_pk_mul_f32 v[52:53], v[52:53], v[54:55] op_sel_hi:[1,0]\nv_cvt_pk_bf16_f32 v52, v52, v53")
    for g in range(4):
        for t in range(4): A(f"v_mov_b32_dpp v{AO+t}, v52 row_newbcast:{4*g+t} row_mask:{hex(1<<g)} bank_mask:0xf")
    mfmatile(D, AO, WT, True)
    A("s_mov_b64 exec, 0xffff")
    row0_write(29, D, 0, 0)
    A("s_mov_b64 exec, -1\ns_waitcnt lgkmcnt(0)")
    A("s_barrier")
    stamp(5, [2])
    A("s_cmp_eq_u32 s4, 0\ns_cbranch_scc0 L_fin")
    for i in range(4): A(f"ds_read_b64 {vr(XA+2*i,2)}, v28 offset:{L_YR+512*i}")
    A("s_waitcnt lgkmcnt(0)")
    A(f"v_pk_add_f32 {vr(XA,2)}, {vr(XA,2)}, {vr(XA+2,2)}\nv_pk_add_f32 {vr(XA+4,2)}, {vr(XA+4,2)}, {vr(XA+6,2)}\nv_mov_b32 v{XA+2}, {TAG}\nv_pk_add_f32 {vr(XA,2)}, {vr(XA,2)}, {vr(XA+4,2)}")
    A(f"global_store_dwordx4 v25, {vr(XA,4)}, s[30:31] sc1")
    A("s_branch L_end")
    A("L_fin:")
    A("s_cmp_eq_u32 s4, 1\ns_cbranch_scc0 L_bump\ns_cmp_lt_u32 s2, 128\ns_cbranch_scc0 L_end")
    poll("p2", [(f"global_load_dwordx4 v[16:19], v{H2A}, s[30:31] sc1", 18), (f"global_load_dwordx4 v[20:23], v{H2A+1}, s[30:31] sc1", 22)], psleep)
    A("v_pk_add_f32 v[16:17], v[16:17], v[20:21]\nv_permlane32_swap_b32 v16, v17\nv_add_f32 v8, v16, v17")
    A("v_mov_b32 v9, v8\nv_permlane16_swap_b32 v8, v9\nv_add_f32 v8, v8, v9")
    for n_ in (4, 8): A(f"v_add_f32_dpp v8, v8, v8 row_ror:{n_} row_mask:0xf bank_mask:0xf")
    rbf(8)
    A(f"v_mul_f32 v8, v8, v{G}"); rbf(8)
    A(f"v_add_f32 v8, v8, v{XV}\nv_cvt_pk_bf16_f32 v8, v8, v8")
    A("s_mov_b32 exec_lo, 15\ns_mov_b32 exec_hi, 15")
    A(f"global_store_short v{OA}, v8, s[26:27]")
    A("s_branch L_end")
    A("L_bump:")
    A("s_cmp_eq_u32 s4, 2\ns_cbranch_scc0 L_end\ns_cmp_eq_u32 s2, 255\ns_cbranch_scc0 L_end")
    A(f"v_lshlrev_b32 v4, 14, v1\nv_add_u32 v4, {WS_H2}, v4")
    poll("p3", [("global_load_dwordx4 v[16:19], v4, s[30:31] sc1", 18)], 1, [0xffff])
    A(f"s_mov_b64 exec, 1\nv_mov_b32 v4, {WS_E}\nglobal_store_dword v4, v50, s[30:31] sc1")
    A("L_end:")
    if stamps:
        A("s_waitcnt vmcnt(0)")
        stamp(6)
        A("L_stamps:")
        if leak:
            role, idx = leak[0], int(leak[1])
            A("s_waitcnt lgkmcnt(0)")
            A("s_cmp_ge_u32 s3, 4\ns_cbranch_scc%d L_exit" % (1 if role == "s" else 0))
            if len(leak) > 2: A(f"s_cmp_eq_u32 s2, {int(leak[2:])}\ns_cbranch_scc0 L_exit")
            A(f"L_leak:\ns_sleep 4\ns_memrealtime s[54:55]\ns_waitcnt lgkmcnt(0)\ns_sub_u32 s54, s54, s{64+2*idx}\ns_cmp_lt_u32 s54, 6000\ns_cbranch_scc1 L_leak")
        else:
            A("s_getreg_b32 s78, hwreg(HW_REG_XCC_ID)\ns_mov_b32 s79, 0")
            A("s_waitcnt lgkmcnt(0)\ns_mov_b64 exec, 1\ns_lshl_b32 s54, s2, 3\ns_add_u32 s54, s54, s3\ns_lshl_b32 s54, s54, 6\ns_add_u32 s54, s54, 0x10000000\nv_mov_b32 v4, s54")
            for i in range(4):
                for k in range(4): A(f"v_mov_b32 v{8+k}, s{64+4*i+k}")
                A(f"global_store_dwordx4 v4, v[8:11], s[30:31] offset:{16*i}")
    A("L_exit:")
    A("s_endpgm")
    A.check_all_edges()
    out = HEADER
    out += f"; @launch grid=(256,1,1) block=(512,1,1) lds={L_SIZE}\n"
    out += f'.amdgcn_target "amdgcn-amd-amdhsa--gfx950"\n.text\n.globl {NAME}_kernel\n.p2align 8\n.type {NAME}_kernel,@function\n'
    out += A.text()
    out += f""".section .rodata,"a"
.p2align 6
.amdhsa_kernel {NAME}_kernel
  .amdhsa_next_free_vgpr 244
  .amdhsa_next_free_sgpr 100
  .amdhsa_accum_offset 244
  .amdhsa_group_segment_fixed_size 0
  .amdhsa_kernarg_size 96
  .amdhsa_user_sgpr_count 2
  .amdhsa_user_sgpr_kernarg_segment_ptr 1
  .amdhsa_system_sgpr_workgroup_id_x 1
  .amdhsa_float_denorm_mode_32 3
.end_amdhsa_kernel
"""
    return out

if __name__ == "__main__":
    ap = argparse.ArgumentParser()
    ap.add_argument("out"); ap.add_argument("--stamps", action="store_true"); ap.add_argument("--nomimic", action="store_true")
    ap.add_argument("--thr", type=int, default=4); ap.add_argument("--sset", type=int, default=0); ap.add_argument("--qsleep", type=int, default=0); ap.add_argument("--psleep", type=int, default=0); ap.add_argument("--noffn", action="store_true"); ap.add_argument("--R", type=int, default=16); ap.add_argument("--rot", type=int, default=2); ap.add_argument("--trk", type=int, default=2); ap.add_argument("--q0sleep", type=int, default=0); ap.add_argument("--exp", default=""); ap.add_argument("--RV", type=int, default=4); ap.add_argument("--lim", type=int, default=-1); ap.add_argument("--ctl", default=""); ap.add_argument("--pol", default="nnn"); ap.add_argument("--leak", default=""); ap.add_argument("--fq", type=int, default=8); ap.add_argument("--fh", type=int, default=16); ap.add_argument("--wo2", type=int, default=7); ap.add_argument("--b0late", action="store_true"); ap.add_argument("--toff", type=int, default=700); ap.add_argument("--krate", type=int, default=57); ap.add_argument("--prothr", type=int, default=None)
    a = ap.parse_args()
    ck = {}
    if a.ctl:
        p = a.ctl.split("/")
        ck = dict(ctl=True, ctl_thr=[int(x) for x in p[0].split(",")], ctl_d=[int(x) for x in p[1].split(",")], ctl_int=int(p[2]), ctl_t0=int(p[3]), ctl_tab=[int(c, 16) for c in p[4]])
    open(a.out, "w").write(gen(stamps=a.stamps, mimic=not a.nomimic, thr=a.thr, sset=a.sset, qsleep=a.qsleep, psleep=a.psleep, noffn=a.noffn, R=a.R, rot=a.rot, trk=a.trk, q0sleep=a.q0sleep, exp=a.exp, RV=a.RV, lim=a.lim, pol=a.pol, leak=a.leak, fq=a.fq, fh=a.fh, wo2=a.wo2, b0first=not a.b0late, toff=a.toff, krate=a.krate, prothr=a.prothr, **ck))
```

```python
import sys, argparse
from asmlib import Asm
NAME = "recurrent_scan__gqa_block_cached__glu_gated_reglu__decode"

HEADER = open("cdna_kernels/" + NAME + ".s.ref").read().split("; Override launch")[0]

WS_QP = 0x0
WS_G1 = 0x90000
WS_F = 0x20000
WS_H2 = 0x40000
WS_E = 0x80000
WS_H1 = 0x100000
L_PRG = 0; L_MODE = 256; L_CNT = 264; L_ML = 384; L_Q = 512; L_TP = 1536; L_YR = 2048; L_OP = 4096; L_FP = 12288; L_SC = 16384; L_WO = 32768; L_FF = 65536; L_SIZE = 98304
WS_FAST = 0xE0000

def gen(stamps=False, mimic=True, thr=4, spin=1 << 16, sset=0, qsleep=0, psleep=0, noffn=False, R=16, rot=2, trk=2, q0sleep=0, exp='', RV=4, lim=-1, ctl=False, ctl_thr=(3, 2), ctl_d=(8, 24), ctl_int=32, ctl_t0=80, pol='nnn', leak='', fq=8, fh=16, wo2=7, b0first=True, toff=700, krate=57, ctl_tab=(9, 9, 4, 4, 0, 0, 0, 0), prothr=None):
    PK, PV, PW = [{'n': 'nt', 'd': ''}[c] for c in pol]
    A = Asm()
    nst = [0]
    def stamp(i, sets=None):
        if stamps and (sets is None or sset in sets): A(f"s_memrealtime s[{64+2*i}:{65+2*i}]")
    def vr(a, n): return f"v[{a}:{a+n-1}]"
    lab = [0]
    def newlab(p):
        lab[0] += 1; return f"L_{p}{lab[0]}"

    A(f"{NAME}_kernel:")
    stamp(0)
    A("s_cmp_ge_u32 s2, 256\ns_cbranch_scc1 L_exit")
    A("s_load_dwordx16 s[8:23], s[0:1], 0\ns_load_dwordx8 s[24:31], s[0:1], 64")
    A("v_lshrrev_b32 v4, 6, v0\nv_and_b32 v1, 63, v0\nv_mov_b32 v6, 0\nv_readfirstlane_b32 s3, v4\nv_mov_b32 v7, 0")
    A(f"ds_write_b64 v6, v[6:7] offset:{L_CNT}\nds_write_b64 v6, v[6:7] offset:{L_MODE}")
    A("ds_write_b64 v6, v[6:7]")
    A("s_and_b32 s32, s2, 7\ns_bfe_u32 s33, s2, 0x10003\ns_lshr_b32 s34, s2, 4\ns_lshl_b32 s35, s33, 3\ns_add_u32 s35, s35, s32")
    A("v_lshrrev_b32 v2, 4, v1\nv_and_b32 v3, 15, v1")
    A("s_mov_b32 s49, 0x05040100\ns_mov_b32 s50, 0x07060302\ns_mov_b32 s51, 0xffff0000\ns_mov_b32 s53, 0x3fb8aa3b")
    A("s_mov_b32 s39, 0x20000\ns_mov_b32 s43, 0x20000")
    A("s_cmp_gt_u32 s35, 11\ns_subb_u32 s54, s35, 0\ns_cmp_gt_u32 s35, 13\ns_subb_u32 s54, s54, 0")
    A("s_lshr_b32 s55, s34, 3\ns_sub_u32 s94, 2, s55\ns_add_u32 s55, s55, 2\ns_lshl_b32 s95, s54, s55\ns_and_b32 s55, s34, 7\ns_add_u32 s95, s95, s55")
    A("s_lshr_b32 s55, s34, 2\ns_cmp_eq_u32 s55, 1\ns_cselect_b32 s94, 0, s94\ns_bitcmp1_b32 0x2800, s35\ns_cselect_b32 s94, 0, s94")
    if noffn: A("s_mov_b32 s94, 0")
    A("s_and_b32 s4, s3, 3\ns_lshr_b32 s5, s34, 2\ns_and_b32 s6, s34, 3\ns_lshl_b32 s7, s5, 2\ns_add_u32 s7, s7, s4")
    A("s_cmp_ge_u32 s3, 4\ns_cbranch_scc1 L_aux")

    Q, P, M, Lr, S, TD, D, O, T, RING = 4, 8, 12, 13, 20, 28, 32, 48, 80, 112
    def RB(slot, u): return RING + 8 * slot + 4 * u
    A("s_lshl_b32 s54, s35, 4\ns_add_u32 s54, s54, s34")
    A(f"s_mul_i32 s44, s54, {rot * 8192}\ns_and_b32 s44, s44, 0x7ffff\ns_lshl_b32 s54, s54, 19")
    A("s_lshl_b32 s55, s3, 11")
    A("v_lshrrev_b32 v14, 2, v3\nv_lshlrev_b32 v14, 8, v14\nv_and_b32 v15, 3, v1\nv_lshlrev_b32 v15, 4, v15")
    A("v_lshl_add_u32 v14, v2, 6, v14\nv_add3_u32 v14, v14, v15, s55")
    A("s_mov_b32 s38, 0x80000")
    A("v_lshlrev_b32 v16, 4, v3\nv_lshl_add_u32 v17, v2, 11, v16")
    A("s_lshl_b32 s56, s6, 8\ns_lshl_b32 s45, s32, 4\ns_add_u32 s45, s45, s7\ns_lshl_b32 s45, s45, 15\ns_add_u32 s45, s45, s56")
    A(f"s_lshl_b32 s56, s33, 14\ns_add_u32 s45, s45, s56\ns_lshl_b32 s57, s4, 13\ns_lshl_b32 s56, s33, 12\ns_add_u32 s46, s57, s56\ns_add_u32 s46, s46, {L_WO}\ns_add_u32 s47, s57, {L_FF}")
    A("s_mov_b32 s82, 0x400000\ns_mov_b32 s83, 0x20000\ns_mov_b32 s90, 0x1c0000\ns_mov_b32 s91, 0x20000")
    A("s_and_b32 s56, s95, 3\ns_lshl_b32 s57, s56, 2\ns_add_u32 s57, s57, s4\ns_mul_i32 s92, s57, 0x1c000\ns_lshr_b32 s57, s95, 3\ns_lshl_b32 s57, s57, 8\ns_add_u32 s92, s92, s57")
    A("s_and_b32 s57, s95, 0xfc\ns_add_u32 s57, s57, s4\ns_lshl_b32 s57, s57, 15\ns_lshl_b32 s56, s56, 8\ns_add_u32 s57, s57, s56")
    A("s_movk_i32 s93, 0xe00\ns_cmp_eq_u32 s94, 2\ns_cselect_b32 s92, s57, s92\ns_cselect_b32 s93, 0x400, s93\ns_lshl_b32 s57, s93, 3\nv_mad_u32_u24 v18, v2, s57, v16")
    A("s_waitcnt lgkmcnt(0)")
    A("s_add_u32 s36, s10, s54\ns_addc_u32 s37, s11, 0\ns_and_b32 s37, s37, 0xffff")
    A("s_mov_b32 s80, s16\ns_and_b32 s81, s17, 0xffff")
    A("s_bitcmp0_b32 s95, 2\ns_cselect_b32 s88, s20, s22\ns_cselect_b32 s89, s21, s23\ns_cmp_eq_u32 s94, 2\ns_cselect_b32 s88, s24, s88\ns_cselect_b32 s89, s25, s89\ns_and_b32 s89, s89, 0xffff")
    def wo_half():
        for i in range(2):
            A(f"s_mov_b32 m0, s46\ns_waitcnt vmcnt({thr})")
            A(f"buffer_load_dwordx4 v17, s[80:83], s45 offen {PW} lds\nbuffer_load_dwordx4 v17, s[80:83], s45 offen offset:1024 {PW} lds")
            A("s_xor_b32 s45, s45, 0x2000\ns_xor_b32 s46, s46, 0x800")
        A("s_xor_b32 s45, s45, 0x4000\ns_xor_b32 s46, s46, 0x1000")
    if b0first: A("s_barrier")
    if 'O' not in exp: wo_half()
    if not b0first: A("s_barrier")
    A("s_cmp_eq_u32 s94, 0\ns_cbranch_scc1 L_nof")
    for i in range(8):
        A(f"s_mov_b32 m0, s47\ns_add_u32 s47, s47, 0x400")
        if i % 2 == 0: A(f"s_waitcnt vmcnt({thr})")
        A(f"buffer_load_dwordx4 v18, s[88:91], s92 offen {PW} lds\ns_add_u32 s92, s92, s93")
    A("L_nof:")
    def issue(slot, pol=None):
        for u in range(2):
            A(f"buffer_load_dwordx4 {vr(RB(slot,u),4)}, v14, s[36:39], s44 offen offset:{u*1024} {PK if pol is None else pol}")
        A("s_add_u32 s44, s44, 0x2000\ns_and_b32 s44, s44, 0x7ffff")
        if prog and ctl: A("s_add_u32 s57, s57, 4")
        if prog: A(f"ds_add_u32 v0, v15 offset:{L_PRG}")
    def throttle():
        if not ctl:
            A(f"s_waitcnt vmcnt({thr})"); return
        l_ = newlab("th"); c_ = A.counted
        A(f"s_waitcnt vmcnt({thr})\ns_cmp_eq_u32 s45, 0\ns_cbranch_scc1 {l_}")
        A.counted = False
        if len(ctl_thr) > 1: A(f"s_waitcnt vmcnt({ctl_thr[0]})\ns_cmp_eq_u32 s45, 1\ns_cbranch_scc1 {l_}")
        A(f"s_waitcnt vmcnt({ctl_thr[-1]})")
        A(f"{l_}:"); A.counted = c_
    prog = False
    if prothr is not None: A("s_cmp_eq_u32 s94, 0\ns_cselect_b64 vcc, 0, -1")
    for n in range(R):
        A(f"s_waitcnt vmcnt({thr})")
        if prothr is not None:
            l_ = newlab("pt"); A(f"s_cbranch_vccnz {l_}\ns_waitcnt vmcnt({prothr})\n{l_}:")
        issue(n)
        if n == wo2 and 'O' not in exp: wo_half()
        if n == R - 4:
            A("s_add_u32 s40, s12, s54\ns_addc_u32 s41, s13, 0\ns_and_b32 s41, s41, 0xffff")
            for i in range(32): A(f"v_mov_b32 v{O+i}, 0")
            A(f"v_mov_b32 v{M}, 0xff7fffff\nv_mov_b32 v{Lr}, 0")
            A("v_and_b32 v16, 3, v1\nv_lshlrev_b32 v16, 8, v16\nv_lshrrev_b32 v17, 2, v1\nv_lshl_add_u32 v16, v17, 4, v16")
            A(f"s_lshl_b32 s56, s3, 12\ns_add_u32 s56, s56, {L_SC}\nv_lshl_add_u32 v19, v2, 6, v15\nv_add_u32 v19, s56, v19")
            A("s_mov_b32 s52, 0x3db504f3\ns_mov_b32 s48, 0\ns_mov_b32 s46, 0x000f000f\ns_mov_b32 s47, 0x000f000f")
    stamp(1)
    A("s_barrier")
    A(f"ds_read_b128 {vr(Q,4)}, v16 offset:{L_Q}")
    A("s_waitcnt lgkmcnt(0)")
    stamp(2)
    NIT = 64 // R
    def dpp(k):
        d0 = D + 8 * (k & 1); d1 = d0 + 4
        A(f"v_add_f32_dpp v{TD}, v{d0+3}, v{d0+2} row_shl:4 row_mask:0xf bank_mask:0xf bound_ctrl:0")
        A(f"v_add_f32_dpp v{TD+1}, v{d1+3}, v{d1+2} row_shl:4 row_mask:0xf bank_mask:0xf bound_ctrl:0")
        A(f"v_add_f32_dpp v{TD+2}, v{d0+1}, v{d0} row_shl:4 row_mask:0xf bank_mask:0xf bound_ctrl:0")
        A(f"v_add_f32_dpp v{TD+3}, v{d1+1}, v{d1} row_shl:4 row_mask:0xf bank_mask:0xf bound_ctrl:0")
    def fin(k):
        A(f"v_add_f32_dpp v{S}, v{TD}, v{TD+2} row_shl:8 row_mask:0xf bank_mask:0xf bound_ctrl:0")
        A(f"v_add_f32_dpp v{S+1}, v{TD+1}, v{TD+3} row_shl:8 row_mask:0xf bank_mask:0xf bound_ctrl:0")
        A(f"v_cvt_pk_bf16_f32 v16, v{S}, v{S+1}\nv_lshlrev_b32 v{S}, 16, v16\nv_and_b32 v{S+1}, s51, v16")
        A(f"v_mul_f32 v{S}, s52, v{S}\nv_mul_f32 v{S+1}, s52, v{S+1}")
        A(f"v_cvt_pk_bf16_f32 v{P+(k&3)}, v{S}, v{S+1}\nv_max3_f32 v{M}, v{M}, v{S}, v{S+1}")
        if k & 3 == 3:
            A(f"s_mov_b64 exec, s[46:47]\nds_write_b128 v19, {vr(P,4)} offset:{256*(k>>2)}\ns_mov_b64 exec, -1")
    ST = R // RV
    A("s_mov_b64 vcc, 0\nv_mov_b32 v17, 0\nv_mov_b32 v15, 1\ns_mov_b32 s45, 0\ns_mov_b32 s57, 0\nv_lshlrev_b32 v0, 2, v1")
    def rdmode(): A(f"ds_read2st64_b32 v[240:241], v17 offset0:0 offset1:1\ns_mov_b32 s58, s57")
    def setmode():
        A(f"v_sub_u32 v240, v241, v240\nv_readfirstlane_b32 s59, v240\ns_add_u32 s59, s59, s58\ns_cmp_gt_i32 s59, {ctl_d[0]}\ns_cselect_b32 s45, 1, 0")
        if len(ctl_d) > 1: A(f"s_cmp_gt_i32 s59, {ctl_d[1]}\ns_cselect_b32 s45, 2, s45")
    prog = True
    A("L_kloop:")
    for k in range(R):
        d0 = D + 8 * (k & 1)
        if k > 0: dpp(k - 1)
        A(f"v_mfma_f32_16x16x32_bf16 {vr(d0,4)}, {vr(RB(k,0),4)}, {vr(Q,4)}, 0")
        A(f"v_mfma_f32_16x16x32_bf16 {vr(d0+4,4)}, {vr(RB(k,1),4)}, {vr(Q,4)}, 0")
        if k % ST != ST - 1:
            l1 = newlab("ks"); A(f"s_cbranch_vccnz {l1}"); A.counted = False
        throttle()
        issue(k)
        if k % ST != ST - 1:
            A(f"{l1}:"); A.counted = True
        if ctl and k & 1 == 0: rdmode()
        if ctl and k & 1 == 1: A("s_waitcnt lgkmcnt(0)"); setmode()
        if k > 0: fin(k - 1)
    dpp(R - 1); fin(R - 1)
    A(f"s_add_u32 s48, s48, 1\nv_add_u32 v19, {64*R}, v19")
    A(f"s_cmp_lt_u32 s48, {NIT-1}\ns_cbranch_scc1 L_kloop")
    A(f"s_cmp_eq_u32 s48, {NIT-1}\ns_cbranch_scc0 L_kdone")
    A("s_mov_b32 s36, s40\ns_mov_b32 s37, s41\nv_lshl_add_u32 v14, v1, 4, s55\ns_mov_b64 vcc, -1\ns_branch L_kloop")
    A("L_kdone:")
    A(f"v_cvt_pk_bf16_f32 v{M}, v{M}, v{M}\nv_and_b32 v{M}, s51, v{M}\nv_add_u32 v19, -4096, v19")
    A(f"v_mov_b32 v18, v{M}\nv_permlane32_swap_b32 v{M}, v18\nv_max_f32 v{M}, v{M}, v18\nv_mov_b32 v18, v{M}\nv_permlane16_swap_b32 v{M}, v18\nv_max_f32 v{M}, v{M}, v18")
    for n_ in (4, 8, 12): A(f"v_mov_b32_dpp v{M}, v{M} row_shr:{n_} row_mask:0xf bank_mask:{hex(1 << (n_ // 4))}")
    A(f"v_mul_f32 v{M}, s53, v{M}")
    A("s_mov_b32 s48, 0\ns_mov_b64 vcc, 0\ns_waitcnt lgkmcnt(0)")
    stamp(5, [3])
    assert thr <= 2 * (RV - 2)
    def VP(k): return ST * k + ST - 1
    def perms(k):
        t = k & 3
        for d in range(4):
            A(f"v_perm_b32 v{T+4*(2*d)+t}, v{RB(VP(k),1)+d}, v{RB(VP(k),0)+d}, s49")
            A(f"v_perm_b32 v{T+4*(2*d+1)+t}, v{RB(VP(k),1)+d}, v{RB(VP(k),0)+d}, s50")
    nfl = (thr + 3) // 2
    def tail(k):
        rem = RV - 1 - (k + 1)
        lastwait = 2 * rem if (0 <= rem < nfl) else None
        l1 = newlab("sk")
        A(f"s_cbranch_vccnz {l1}")
        A.counted = False
        throttle()
        issue(VP(k), PV)
        if lastwait is not None:
            l2 = newlab("jn")
            A(f"s_branch {l2}\n{l1}:\ns_waitcnt vmcnt({lastwait})\n{l2}:")
        else:
            A(f"{l1}:")
        A.counted = True
    A("L_vloop:")
    for k in range(RV):
        t = k & 3
        if t == 0:
            A(f"ds_read_b128 {vr(TD,4)}, v19 offset:{256*(k>>2)}")
            if ctl: rdmode()
            perms(k)
        elif t == 1:
            perms(k)
            A("s_waitcnt lgkmcnt(0)")
            if ctl: setmode()
            for i in range(4): A(f"v_lshlrev_b32 v{S+2*i}, 16, v{TD+i}\nv_and_b32 v{S+2*i+1}, s51, v{TD+i}")
            for i in range(8): A(f"v_fma_f32 v{S+i}, v{S+i}, s53, -v{M}")
            for i in range(8): A(f"v_exp_f32 v{S+i}, v{S+i}")
        elif t == 2:
            if ctl: rdmode()
            perms(k)
            for i in range(4): A(f"v_cvt_pk_bf16_f32 v{P+i}, v{S+2*i}, v{S+2*i+1}")
            A(f"v_pk_add_f32 {vr(S,2)}, {vr(S,2)}, {vr(S+2,2)}\nv_pk_add_f32 {vr(S+4,2)}, {vr(S+4,2)}, {vr(S+6,2)}")
            A(f"v_pk_add_f32 {vr(S,2)}, {vr(S,2)}, {vr(S+4,2)}\nv_add_f32 v{Lr}, v{Lr}, v{S}\nv_add_f32 v{Lr}, v{Lr}, v{S+1}")
        else:
            perms(k)
            for e in range(8):
                A(f"v_mfma_f32_16x16x32_bf16 {vr(O+4*e,4)}, {vr(T+4*e,4)}, {vr(P,4)}, {vr(O+4*e,4)}")
            if ctl: A("s_waitcnt lgkmcnt(0)"); setmode()
        tail(k)
    A(f"v_add_u32 v19, {64*RV}, v19")
    A(f"s_add_u32 s48, s48, 1\ns_cmp_eq_u32 s48, {64//RV-1}\ns_cselect_b64 vcc, -1, 0\ns_cmp_lt_u32 s48, {64//RV}\ns_cbranch_scc1 L_vloop")
    stamp(3)
    A(f"v_mov_b32 v18, v{Lr}\nv_lshlrev_b32 v16, 9, v3\nv_lshl_add_u32 v16, v2, 7, v16\nv_permlane32_swap_b32 v{Lr}, v18\nv_add_f32 v{Lr}, v{Lr}, v18")
    A(f"v_mov_b32 v18, v{Lr}\nv_add_u32 v16, s55, v16\ns_lshl_b32 s56, s3, 3\nv_lshlrev_b32 v17, 5, v3\nv_permlane16_swap_b32 v{Lr}, v18\nv_add_f32 v{Lr}, v{Lr}, v18")
    A("v_add_u32 v17, s56, v17")
    A("s_mov_b32 exec_lo, 0x000f000f\ns_mov_b32 exec_hi, 0x000f000f")
    for e in range(8): A(f"ds_write_b128 v16, {vr(O+4*e,4)} offset:{L_OP+16*e}")
    A(f"ds_write_b64 v17, {vr(M,2)} offset:{L_ML}")
    A("s_waitcnt lgkmcnt(0)")
    A("s_barrier")
    if stamps:
        stamp(4); stamp(5, [0, 1, 2]); stamp(6); A("s_branch L_stamps")
    else:
        A("s_endpgm")

    XA, XB, AO, WQ, WO, T, D, WT, UP, U = 8, 16, 20, 32, 64, 96, 128, 160, 192, 224
    TAG = "s46"; FAR = "s45"; XCC = "s44"
    def publish(name, stores, cond):
        A(f"s_cmp_lg_u32 {cond}, 0\ns_cbranch_scc1 L_{name}x")
        for t_ in stores: A(t_)
        A(f"s_branch L_{name}y\nL_{name}x:")
        for t_ in stores: A(t_ + " sc1")
        A(f"L_{name}y:")
    A("L_aux:")
    A("s_setprio 3")
    A("v_lshlrev_b32 v4, 5, v1")
    A("v_lshrrev_b32 v24, 3, v3\nv_lshl_add_u32 v24, v24, 2, v2\nv_and_b32 v25, 7, v1")
    A("s_and_b32 s56, s34, 1\ns_lshl_b32 s57, s56, 2\ns_add_u32 s57, s57, s4")
    A("s_lshl_b32 s54, s33, 10\ns_lshl_b32 s55, s57, 7\ns_add_u32 s54, s54, s55\nv_lshl_add_u32 v5, v24, 4, s54")
    A("v_lshlrev_b32 v25, 4, v25\nv_lshl_add_u32 v6, v24, 16, v25")
    A("s_lshl_b32 s44, s57, 19\ns_lshl_b32 s55, s32, 10\ns_add_u32 s44, s44, s55\ns_lshr_b32 s57, s34, 1\ns_lshl_b32 s55, s57, 7\ns_add_u32 s44, s44, s55")
    A("s_mov_b32 s38, 0x400000")
    A("s_waitcnt lgkmcnt(0)")
    A(f"global_load_dwordx4 {vr(XA,4)}, v4, s[8:9]\nglobal_load_dwordx4 {vr(XA+4,4)}, v4, s[8:9] offset:16\nglobal_load_dwordx4 {vr(XB,4)}, v5, s[8:9]")
    A("s_mov_b32 s36, s14\ns_and_b32 s37, s15, 0xffff")
    for s in range(8):
        if 'W' not in exp: A(f"buffer_load_dwordx4 {vr(WQ+4*s,4)}, v6, s[36:39], s44 offen {PW}")
        if s < 7: A("s_add_u32 s44, s44, 0x2000")
    A(f"s_load_dword s47, s[30:31], {WS_E}")
    if ctl:
        A(f"s_lshr_b32 s98, s2, 3\ns_mul_i32 s98, s98, 4352\ns_add_u32 s98, s98, 0x200000")
        A("s_lshl_b32 s54, s32, 2\ns_add_u32 s54, s54, s4\ns_cmp_eq_u32 s54, 3\ns_cbranch_scc0 L_norst\ns_mov_b32 s99, 0\ns_atomic_swap s99, s[30:31], s98\nL_norst:")
    A("s_barrier")
    A(f"s_lshl_b32 s54, s4, 9\ns_add_u32 s54, s54, {L_YR}\nv_lshl_add_u32 v29, v3, 5, s54")
    A("v_lshlrev_b32 v28, 3, v1")
    A(f"v_and_b32 v{WT+1}, 1, v1\nv_lshlrev_b32 v{WT+1}, 10, v{WT+1}\nv_lshl_add_u32 v{WT+1}, v2, 4, v{WT+1}")
    A(f"s_and_b32 s54, s95, 3\ns_lshl_b32 s54, s54, 2\ns_add_u32 s54, s54, s4\ns_lshl_b32 s54, s54, 6\nv_add_u32 v{WT+1}, s54, v{WT+1}")
    A(f"s_cmp_eq_u32 s94, 2\ns_cselect_b32 s59, {WS_F}, 0\ns_cselect_b32 s54, 0, {WS_G1}\ns_add_u32 s59, s59, s54\ns_lshl_b32 s54, s95, 11\ns_add_u32 s59, s59, s54")
    A(f"s_add_u32 s96, s30, {WS_FAST}\ns_addc_u32 s97, s31, 0\ns_getreg_b32 {XCC}, hwreg(HW_REG_XCC_ID, 0, 4)")
    A("s_waitcnt vmcnt(9)")
    stamp(1, [0])
    for d in range(8):
        A(f"v_lshlrev_b32 v{U+2*d}, 16, v{XA+d}\nv_and_b32 v{U+2*d+1}, s51, v{XA+d}")
    def allred32(r, t):
        for n_ in (8, 4, 2, 1): A(f"v_add_f32_dpp v{r}, v{r}, v{r} row_ror:{n_} row_mask:0xf bank_mask:0xf")
        A(f"v_mov_b32 v{t}, v{r}\nv_permlane16_swap_b32 v{r}, v{t}\nv_add_f32 v{r}, v{r}, v{t}")
    for d in range(4): A(f"v_pk_add_f32 {vr(XA+2*d,2)}, {vr(U+4*d,2)}, {vr(U+4*d+2,2)}")
    A(f"v_pk_add_f32 {vr(XA,2)}, {vr(XA,2)}, {vr(XA+2,2)}\nv_pk_add_f32 {vr(XA+4,2)}, {vr(XA+4,2)}, {vr(XA+6,2)}")
    A(f"v_pk_add_f32 {vr(XA,2)}, {vr(XA,2)}, {vr(XA+4,2)}\nv_add_f32 v24, v{XA}, v{XA+1}")
    allred32(24, 25)
    A("v_mul_f32 v24, 0x3b000000, v24")
    for d in range(16): A(f"v_sub_f32 v{U+d}, v{U+d}, v24")
    A(f"v_mul_f32 v26, v{U}, v{U}\nv_mul_f32 v27, v{U+1}, v{U+1}")
    for d in range(2, 16): A(f"v_fmac_f32 v{26+(d&1)}, v{U+d}, v{U+d}")
    A("v_add_f32 v26, v26, v27")
    allred32(26, 25)
    A("v_mul_f32 v26, 0x3b000000, v26")
    A("v_cvt_pk_bf16_f32 v24, v24, v26\nv_and_b32 v26, s51, v24\nv_lshlrev_b32 v24, 16, v24")
    A("v_add_f32 v26, 0x3727c5ac, v26\nv_cvt_pk_bf16_f32 v26, v26, v26\nv_and_b32 v26, s51, v26")
    A("v_sqrt_f32 v26, v26\nv_cvt_pk_bf16_f32 v26, v26, v26\nv_and_b32 v26, s51, v26\nv_rcp_f32 v26, v26")
    A("v_readlane_b32 s60, v24, 0\nv_readlane_b32 s62, v24, 32\nv_readlane_b32 s61, v26, 0\nv_readlane_b32 s63, v26, 32")
    A("s_cmp_eq_u32 s33, 0\ns_cselect_b32 s54, s60, s62\ns_cselect_b32 s55, s61, s63")
    A("v_mov_b32 v30, s54\nv_mov_b32 v31, s55")
    def normalize(src, dst):
        for d in range(4): A(f"v_lshlrev_b32 v{U+2*d}, 16, v{src+d}\nv_and_b32 v{U+2*d+1}, s51, v{src+d}")
        for d in range(8): A(f"v_sub_f32 v{U+d}, v{U+d}, v30")
        for d in range(4): A(f"v_cvt_pk_bf16_f32 v{dst+d}, v{U+2*d}, v{U+2*d+1}")
        for d in range(4): A(f"v_lshlrev_b32 v{U+2*d}, 16, v{dst+d}\nv_and_b32 v{U+2*d+1}, s51, v{dst+d}")
        for d in range(8): A(f"v_mul_f32 v{U+d}, v{U+d}, v31")
        for d in range(4): A(f"v_cvt_pk_bf16_f32 v{dst+d}, v{U+2*d}, v{U+2*d+1}")
    def permtile(src, dst):
        for d in range(4):
            for t in range(4):
                A(f"v_perm_b32 v{dst+4*(2*d)+t}, v{src+4*(2*t+1)+d}, v{src+4*(2*t)+d}, s49")
            for t in range(4):
                A(f"v_perm_b32 v{dst+4*(2*d+1)+t}, v{src+4*(2*t+1)+d}, v{src+4*(2*t)+d}, s50")
    def mfmatile(acc, a, w, zero):
        for e in range(8):
            A(f"v_mfma_f32_16x16x32_bf16 {vr(acc+4*e,4)}, {vr(a,4)}, {vr(w+4*e,4)}, {'0' if zero else vr(acc+4*e,4)}")
    def row0_write(addr, acc, r, off):
        for e in range(0, 8, 2):
            A(f"ds_write2_b32 v{addr}, v{acc+4*e+r}, v{acc+4*(e+1)+r} offset0:{off//4+e} offset1:{off//4+e+1}")
    def poll(name, loads, sleep=0, masks=None, fast=0):
        A(f"s_mov_b32 s58, {spin}")
        for i in range(len(loads)):
            m = masks[i] if masks else -1
            if m == -1: A(f"s_mov_b64 s[{80+2*i}:{81+2*i}], -1")
            else: A(f"s_mov_b32 s{80+2*i}, {hex(m & 0xffffffff)}\ns_mov_b32 s{81+2*i}, {hex(m >> 32)}")
        A(f"L_{name}:")
        def rnd_(tag_, conv):
            for i, (l_, r) in enumerate(loads):
                A(f"s_mov_b64 exec, s[{80+2*i}:{81+2*i}]")
                if len(loads) > 1:
                    A(f"s_cbranch_execz L_{name}{tag_}{i}"); A.counted = False; A(conv(l_)); A.counted = True; A(f"L_{name}{tag_}{i}:")
                else: A(conv(l_))
        if fast == "near":
            A(f"s_cmp_lg_u32 {FAR}, 0\ns_cbranch_scc1 L_{name}x")
            rnd_("f", lambda t_: t_.replace(" sc1", " nt"))
            A(f"s_branch L_{name}y\nL_{name}x:")
        elif fast:
            A(f"s_and_b32 s54, s58, {fast-1}\ns_cmp_eq_u32 s54, 1\ns_cbranch_scc1 L_{name}x")
            rnd_("f", lambda t_: t_.replace("s[30:31]", "s[96:97]").replace(" sc1", " nt"))
            A(f"s_branch L_{name}y\nL_{name}x:")
        rnd_("s", lambda t_: t_)
        if fast: A(f"L_{name}y:")
        A("s_waitcnt vmcnt(0)")
        for i, (l_, r) in enumerate(loads):
            if len(loads) > 1: A(f"s_mov_b64 exec, s[{80+2*i}:{81+2*i}]")
            A(f"v_cmp_ne_u32 s[{80+2*i}:{81+2*i}], {TAG}, v{r}")
        A("s_mov_b64 exec, -1")
        if len(loads) == 1: A("s_or_b64 vcc, s[80:81], s[80:81]")
        else:
            A("s_or_b64 vcc, s[80:81], s[82:83]")
            for i in range(2, len(loads)): A(f"s_or_b64 vcc, vcc, s[{80+2*i}:{81+2*i}]")
        A(f"s_cbranch_scc0 L_{name}d")
        if sleep: A(f"s_sleep {sleep}")
        A(f"s_sub_u32 s58, s58, 1\ns_cbranch_scc0 L_{name}")
        A(f"L_{name}d:")
    def trickle(loads):
        n_ = 0
        for l_ in loads:
            if l_.startswith(("buffer_load", "global_load")):
                if n_ and n_ % trk == 0: A("s_waitcnt vmcnt(0)")
                n_ += 1
            A(l_)
    A("s_waitcnt vmcnt(8)")
    normalize(XB, AO)
    A("s_waitcnt vmcnt(0)")
    stamp(2, [0]); stamp(1, [1])
    permtile(WQ, T)
    mfmatile(D, AO, T, True)
    def xrow(regs, t):
        for i, r in enumerate(regs): A(f"v_mov_b32 v{t+i}, v{r}")
        for i, r in enumerate(regs): A(f"v_permlane32_swap_b32 v{r}, v{t+i}")
        for i, r in enumerate(regs): A(f"v_add_f32 v{r}, v{r}, v{t+i}")
        for i, r in enumerate(regs): A(f"v_mov_b32 v{t+i}, v{r}")
        for i, r in enumerate(regs): A(f"v_permlane16_swap_b32 v{r}, v{t+i}")
        for i, r in enumerate(regs): A(f"v_add_f32 v{r}, v{r}, v{t+i}")
    A("v_mov_b32 v24, 0\nv_mov_b32 v25, 1")
    A("s_lshl_b32 s54, s35, 13\ns_lshl_b32 s55, s56, 12\ns_add_u32 s55, s55, s54\ns_lshl_b32 s57, s57, 9\ns_add_u32 s55, s55, s57\nv_lshl_add_u32 v26, v1, 4, s55")
    A("s_lshl_b32 s55, s4, 10\ns_add_u32 s55, s55, s54\ns_add_u32 s55, s55, 0x1000\nv_lshl_add_u32 v4, v1, 4, s55")
    A("s_mov_b32 exec_lo, 0xff\ns_mov_b32 exec_hi, 0xff00")
    row0_write(29, D, 0, 0)
    A("s_mov_b64 exec, 1")
    A("s_waitcnt lgkmcnt(0)")
    A(f"ds_add_rtn_u32 v27, v24, v25 offset:{L_CNT}")
    A(f"s_add_u32 {TAG}, s47, 0x9e3779b9")
    A("s_waitcnt lgkmcnt(0)")
    stamp(2, [1]); stamp(3, [1])
    A("v_readfirstlane_b32 s54, v27\ns_mov_b64 exec, -1\ns_cmp_eq_u32 s54, 3\ns_cbranch_scc0 L_qwait")
    for i in range(4): A(f"ds_read_b64 {vr(XA+2*i,2)}, v28 offset:{L_YR+512*i}")
    A("s_waitcnt lgkmcnt(0)")
    A(f"v_pk_add_f32 {vr(XA,2)}, {vr(XA,2)}, {vr(XA+2,2)}\nv_pk_add_f32 {vr(XA+4,2)}, {vr(XA+4,2)}, {vr(XA+6,2)}\nv_pk_add_f32 {vr(XA,2)}, {vr(XA,2)}, {vr(XA+4,2)}")
    A(f"v_mov_b32 v{XA+4}, v{XA}\nv_mov_b32 v{XA+5}, v{XA+1}\nv_mov_b32 v{XA+2}, {TAG}\nv_mov_b32 v{XA+3}, {XCC}\nv_permlane32_swap_b32 v{XA}, v{XA+4}\nv_permlane32_swap_b32 v{XA+1}, v{XA+5}")
    A(f"v_pk_add_f32 {vr(XA,2)}, {vr(XA,2)}, {vr(XA+4,2)}")
    A("s_mov_b32 exec_hi, 0")
    if fq: A(f"global_store_dwordx4 v26, {vr(XA,4)}, s[96:97]")
    A(f"global_store_dwordx4 v26, {vr(XA,4)}, s[30:31] sc1\ns_mov_b32 exec_hi, -1")
    stamp(3, [1])
    def ldswait(name, off, val, sleep):
        A(f"s_mov_b32 s58, {spin}\nv_mov_b32 v24, 0")
        A(f"L_{name}:")
        A(f"ds_read_b32 v27, v24 offset:{off}\ns_waitcnt lgkmcnt(0)\nv_cmp_gt_u32 vcc, {val}, v27\ns_cbranch_vccz L_{name}d")
        A(f"s_sleep {sleep}\ns_sub_u32 s58, s58, 1\ns_cbranch_scc0 L_{name}")
        A(f"L_{name}d:")
    A("L_qwait:")
    if q0sleep: A(f"s_sleep {q0sleep}")
    if 'w' in exp: A("s_waitcnt vmcnt(0)")
    if 'Q' not in exp: poll("pq", [(f"global_load_dwordx4 {vr(WQ+4*i,4)}, v4, s[30:31] offset:{-4096 if i == 0 else 0} sc1", WQ + 4 * i + 2) for i in range(2)], qsleep, None, fq)
    else: A("s_waitcnt vmcnt(0)")
    stamp(4, [1])
    A(f"s_lshl_b32 s54, s4, 8\nv_lshl_add_u32 v4, v1, 2, s54\nv_pk_add_f32 {vr(WQ,2)}, {vr(WQ,2)}, {vr(WQ+4,2)}\nv_cvt_pk_bf16_f32 v{WQ}, v{WQ}, v{WQ+1}")
    A(f"ds_write_b32 v4, v{WQ} offset:{L_Q}")
    A(f"v_xor_b32 v5, {XCC}, v{WQ+3}\nv_bitop3_b32 v5, v5, v{WQ+7}, {XCC} bitop3:0xf6\nv_mov_b32 v24, 0")
    if 'R' in exp: A("v_mov_b32 v5, 1")
    A(f"v_cmp_ne_u32 vcc, 0, v5\ns_mov_b64 exec, vcc\ns_cbranch_execz L_near\nds_write_b32 v24, v5 offset:{L_MODE+4}\nL_near:\ns_mov_b64 exec, -1")
    A("s_waitcnt lgkmcnt(0)")
    stamp(5, [1])
    A("s_barrier")
    stamp(3, [0]); stamp(1, [2])
    A(f"s_setprio 0\nglobal_load_dwordx4 {vr(XB,4)}, v{WT+1}, s[8:9]")
    A(f"s_lshl_b32 s54, s4, 13\ns_add_u32 s54, s54, {L_WO}\nv_lshl_add_u32 v4, v1, 4, s54")
    for s in range(8): A(f"ds_read_b128 {vr(WO+4*s,4)}, v4 offset:{(s&3)*2048+(s>>2)*1024}")
    for s in range(8): A(f"ds_read_b128 {vr(UP+4*s,4)}, v4 offset:{L_FF-L_WO+s*1024}")
    A(f"ds_read_b32 v5, v24 offset:{L_MODE+4}\ns_waitcnt lgkmcnt(0)\nv_readfirstlane_b32 {FAR}, v5")
    permtile(WO, WT)
    A("s_waitcnt vmcnt(0)")
    A("v_and_b32 v4, 1, v1\ns_cmp_eq_u32 s94, 0\ns_cbranch_scc1 L_w1\ns_cmp_eq_u32 s94, 2\ns_cbranch_scc1 L_down")
    A("v_cmp_eq_u32 vcc, 1, v4\nv_mov_b32 v30, s60\nv_mov_b32 v31, s62\nv_mov_b32 v5, s61\nv_mov_b32 v6, s63")
    A("v_cndmask_b32 v30, v30, v31, vcc\nv_cndmask_b32 v31, v5, v6, vcc")
    normalize(XB, AO)
    A("s_branch L_ftile")
    A("L_down:")
    ldswait("wd", L_PRG, 48, 8)
    A(f"s_lshr_b32 s54, s95, 2\ns_lshl_b32 s54, s54, 14\ns_lshl_b32 s55, s4, 9\ns_add_u32 s54, s54, s55\ns_add_u32 s54, s54, {WS_G1+4096}")
    A("v_lshrrev_b32 v5, 5, v1\nv_lshlrev_b32 v5, 13, v5\nv_and_b32 v6, 31, v1\nv_lshl_add_u32 v5, v6, 4, v5\nv_add_u32 v5, s54, v5")
    if 'G' not in exp: poll("pg", [(f"global_load_dwordx4 {vr(D+4*i,4)}, v5, s[30:31] offset:{2048*i-4096} sc1", D + 4 * i + 2) for i in range(4)], 32, None, 'near')
    A(f"v_pk_add_f32 {vr(D,2)}, {vr(D,2)}, {vr(D+4,2)}\nv_pk_add_f32 {vr(D+8,2)}, {vr(D+8,2)}, {vr(D+12,2)}\nv_pk_add_f32 {vr(D,2)}, {vr(D,2)}, {vr(D+8,2)}")
    A(f"v_permlane32_swap_b32 v{D}, v{D+1}\nv_cvt_pk_bf16_f32 v24, v{D}, v{D+1}\nv_lshlrev_b32 v25, 16, v24\nv_and_b32 v24, s51, v24")
    A("v_max_f32 v25, 0, v25\nv_mul_f32 v24, v24, v25\nv_cvt_pk_bf16_f32 v24, v24, v24")
    A(f"s_lshl_b32 s54, s4, 7\ns_add_u32 s54, s54, {L_TP}\nv_lshl_add_u32 v5, v1, 1, s54\nv_lshl_add_u32 v6, v4, 6, s54\nv_lshl_add_u32 v6, v2, 4, v6")
    A(f"ds_write_b16 v5, v24\ns_waitcnt lgkmcnt(0)\nds_read_b128 {vr(AO,4)}, v6\ns_waitcnt lgkmcnt(0)")
    A("L_ftile:")
    permtile(UP, T); mfmatile(D, AO, T, True)
    A(f"v_add_u32 v5, {L_FP-L_YR}, v29\nv_add_u32 v6, {L_FP-L_YR+2048}, v29\nv_mov_b32 v24, 0\nv_mov_b32 v25, 1")
    A("s_mov_b64 exec, 0xffff")
    row0_write(5, D, 0, 0); row0_write(6, D, 1, 0)
    A("s_mov_b64 exec, 1\ns_waitcnt lgkmcnt(0)")
    A(f"ds_add_rtn_u32 v27, v24, v25 offset:{L_CNT+4}\ns_waitcnt lgkmcnt(0)")
    A("v_readfirstlane_b32 s54, v27\ns_mov_b64 exec, -1\ns_cmp_eq_u32 s54, 3\ns_cbranch_scc0 L_w1")
    A(f"v_lshlrev_b32 v5, 2, v1\nv_add_u32 v5, {L_FP}, v5")
    for hf in range(2):
        for i in range(4): A(f"ds_read2st64_b32 {vr(WQ+8*hf+2*i,2)}, v5 offset0:{2*i+hf} offset1:{8+2*i+hf}")
    A("v_lshl_add_u32 v5, v1, 4, s59\ns_waitcnt lgkmcnt(0)")
    for hf in range(2):
        r = WQ + 8 * hf
        A(f"v_pk_add_f32 {vr(r,2)}, {vr(r,2)}, {vr(r+2,2)}\nv_pk_add_f32 {vr(r+4,2)}, {vr(r+4,2)}, {vr(r+6,2)}\nv_pk_add_f32 {vr(r,2)}, {vr(r,2)}, {vr(r+4,2)}\nv_mov_b32 v{r+2}, {TAG}")
    A(f"s_lshr_b32 s54, s94, 1\ns_or_b32 s54, s54, {FAR}")
    if 'S' not in exp: publish("sf", [f"global_store_dwordx4 v5, {vr(WQ,4)}, s[30:31]", f"global_store_dwordx4 v5, {vr(WQ+8,4)}, s[30:31] offset:1024"], "s54")
    def rbf(r): A(f"v_cvt_pk_bf16_f32 v{r}, v{r}, v{r}\nv_and_b32 v{r}, s51, v{r}")
    G, XV, OA, H2A = 224, 225, 226, 227
    A("L_w1:")
    if ctl:
        WS_CM = 0x228000
        A("s_cmp_eq_u32 s4, 3\ns_cbranch_scc0 L_noctl")
        if 'X' in exp: A("s_branch L_noctl")
        A(f"s_lshr_b32 s56, s2, 3\ns_sub_u32 s56, 31, s56\ns_mul_i32 s56, s56, {ctl_int}\ns_add_u32 s56, s56, {ctl_t0}")
        A(f"s_mul_i32 s54, s32, 4352\ns_add_u32 s54, s54, {WS_CM}\nv_mov_b32 v5, s54\nv_mov_b32 v24, 0\ns_mov_b32 s58, {spin}\ns_mov_b64 exec, 1")
        A("L_ctl:")
        A("global_load_dword v12, v5, s[30:31] nt\ns_mov_b32 s48, 6")
        A("L_ct1:")
        A(f"ds_read_b32 v27, v24 offset:{L_PRG}\ns_waitcnt lgkmcnt(0)\nv_readfirstlane_b32 s57, v27\ns_cmp_lt_u32 s57, s56\ns_cbranch_scc1 L_ct2")
        A("s_mov_b32 s54, 1\ns_atomic_add s54, s[30:31], s98 glc\ns_mov_b32 s56, -1\ns_waitcnt lgkmcnt(0)")
        A(f"s_min_u32 s54, s54, 7\ns_lshl_b32 s54, s54, 2\ns_lshr_b32 s54, {hex(sum(v << (4*i) for i, v in enumerate(ctl_tab)))}, s54\ns_and_b32 s54, s54, 15\ns_add_u32 s54, s54, {TAG}")
        A("v_mov_b32 v13, s54\nglobal_store_dword v5, v13, s[30:31]")
        A("L_ct2:")
        A("s_sleep 2\ns_sub_u32 s48, s48, 1\ns_cbranch_scc0 L_ct1")
        A(f"s_waitcnt vmcnt(0)\nv_subrev_u32 v12, {TAG}, v12\nv_cmp_gt_u32 vcc, 16, v12\nv_cndmask_b32 v12, 0, v12, vcc\nds_write_b32 v24, v12 offset:{L_MODE}")
        A("s_sub_u32 s58, s58, 1\ns_cbranch_scc1 L_ctle\ns_cmp_lt_u32 s57, 420\ns_cbranch_scc1 L_ctl")
        A("L_ctle:\ns_mov_b64 exec, -1")
        A("L_noctl:")
    A("s_cmp_eq_u32 s4, 1\ns_cbranch_scc0 L_tail\ns_cmp_lt_u32 s2, 128\ns_cbranch_scc0 L_tail")
    A("s_lshr_b32 s56, s2, 6\ns_and_b32 s57, s2, 63")
    A("v_and_b32 v4, 3, v1\nv_lshrrev_b32 v5, 2, v1\nv_lshlrev_b32 v5, 12, v5\nv_lshl_add_u32 v5, v4, 4, v5")
    A(f"s_lshl_b32 s54, s57, 6\ns_lshl_b32 s55, s56, 17\ns_add_u32 s55, s55, s54\ns_add_u32 s55, s55, {WS_H2}\nv_add_u32 v{H2A}, s55, v5\nv_add_u32 v{H2A+1}, 0x10000, v{H2A}")
    A("v_lshrrev_b32 v6, 5, v1\nv_lshl_add_u32 v6, v4, 1, v6")
    A(f"s_lshl_b32 s54, s2, 4\nv_lshl_add_u32 v{OA}, v6, 1, s54\nv_lshlrev_b32 v6, 2, v6")
    A(f"global_load_ushort v{XV}, v{OA}, s[8:9]")
    A(f"s_lshl_b32 s54, s57, 7\ns_add_u32 s54, s54, {WS_F}\nv_lshrrev_b32 v5, 3, v1\nv_lshlrev_b32 v5, 13, v5\nv_and_b32 v7, 7, v1\nv_lshl_add_u32 v5, v7, 4, v5\nv_add_u32 v5, s54, v5\nv_add_u32 v7, 0x10000, v5")
    A(f"v_mov_b32 v20, 0\nv_mov_b32 v21, 0")
    if noffn or 'F' in exp: A("s_branch L_tail")
    ldswait("wf", L_PRG, 160, 16)
    poll("pf", [("global_load_dwordx4 v[16:19], v5, s[30:31] sc1", 18), ("global_load_dwordx4 v[20:23], v7, s[30:31] sc1", 22)], 64, [-1, (1 << 48) - 1])
    A("v_pk_add_f32 v[16:17], v[16:17], v[20:21]")
    A("s_cmp_eq_u32 s56, 0\ns_cselect_b64 vcc, 0, -1\nv_cndmask_b32 v8, v16, v17, vcc")
    A("v_add_f32_dpp v8, v8, v8 row_ror:8 row_mask:0xf bank_mask:0xf")
    xrow([8], 9)
    rbf(8)
    A(f"v_mul_f32 v9, s53, v8\nv_exp_f32 v9, -v9\nv_add_f32 v9, 1.0, v9\nv_rcp_f32 v9, v9\nv_mul_f32 v8, v8, v9")
    rbf(8)
    A(f"ds_bpermute_b32 v{G}, v6, v8\nv_lshlrev_b32 v{XV}, 16, v{XV}")
    A("L_tail:")
    A(f"s_lshl_b32 s54, s4, 9\nv_add_u32 v4, s54, v28\ns_lshl_b32 s55, s4, 5\nv_mov_b32 v5, s55")
    A(f"s_lshl_b32 s56, s35, 16\ns_add_u32 s56, s56, {WS_H1}\ns_lshl_b32 s57, s4, 14\ns_add_u32 s57, s57, s56\ns_lshl_b32 s58, s34, 8\ns_add_u32 s57, s57, s58")
    A("v_lshlrev_b32 v6, 12, v2\nv_lshl_add_u32 v6, v3, 4, v6\nv_add_u32 v6, s57, v6")
    A("s_lshl_b32 s58, s7, 12\ns_add_u32 s56, s56, s58\nv_lshl_add_u32 v26, v1, 4, s56\nv_lshl_add_u32 v27, v1, 8, s56")
    A(f"s_lshl_b32 s56, s35, 2\ns_add_u32 s56, s56, s5\ns_lshl_b32 s56, s56, 12\ns_lshl_b32 s57, s6, 10\ns_add_u32 s56, s56, s57\ns_add_u32 s56, s56, {WS_H2}\nv_lshl_add_u32 v25, v1, 4, s56")
    A(f"v_mov_b32 v50, {TAG}")
    A("s_waitcnt vmcnt(0) lgkmcnt(0)")
    stamp(2, [2])
    A("s_barrier")
    stamp(4, [0]); stamp(3, [2])
    A(f"ds_read_b128 v[40:43], v5 offset:{L_ML}\nds_read_b128 v[44:47], v5 offset:{L_ML+16}")
    for i in range(4): A(f"ds_read_b64 {vr(32+2*i,2)}, v4 offset:{L_OP+2048*i}")
    A("s_waitcnt lgkmcnt(0)" if stamps else "s_waitcnt lgkmcnt(4)")
    A("v_max3_f32 v51, v40, v42, v44\nv_max_f32 v51, v51, v46")
    for i in range(4): A(f"v_sub_f32 v{40+2*i}, v{40+2*i}, v51")
    for i in range(4): A(f"v_exp_f32 v{40+2*i}, v{40+2*i}")
    A("v_mul_f32 v41, v40, v41")
    for i in range(1, 4): A(f"v_fmac_f32 v41, v{40+2*i}, v{41+2*i}")
    A("v_rcp_f32 v52, v41\nv_log_f32 v53, v41")
    A("s_waitcnt lgkmcnt(0)")
    A("v_pk_mul_f32 v[48:49], v[32:33], v[40:41] op_sel_hi:[1,0]")
    for i in range(1, 4): A(f"v_pk_fma_f32 v[48:49], {vr(32+2*i,2)}, {vr(40+2*i,2)}, v[48:49] op_sel_hi:[1,0,1]")
    A("v_add_f32 v51, v51, v53\nv_pk_mul_f32 v[48:49], v[48:49], v[52:53] op_sel_hi:[1,0]")
    publish("sh", ["global_store_dwordx4 v6, v[48:51], s[30:31]"], FAR)
    if lim >= 0:
        A("s_cmp_eq_u32 s4, 0\ns_cbranch_scc0 L_lpd")
        A(f"s_mov_b32 s58, {spin}\ns_mov_b64 exec, 0xffff")
        A("L_lp:")
        A(f"global_load_dword v12, v27, s[30:31] offset:8 sc1\ns_waitcnt vmcnt(0)\nv_cmp_ne_u32 vcc, {TAG}, v12\ns_mov_b64 exec, vcc\ns_bcnt1_i32_b64 s54, vcc")
        A(f"s_cmp_le_u32 s54, {lim}\ns_cbranch_scc1 L_lpe\ns_sub_u32 s58, s58, 1\ns_cbranch_scc0 L_lp")
        A("L_lpe:\ns_mov_b64 exec, -1\nL_lpd:\ns_barrier")
    poll("p1", [(f"global_load_dwordx4 {vr(64+4*i,4)}, v26, s[30:31] offset:{1024*i} sc1", 64 + 4 * i + 2) for i in range(4)], psleep, None, 'near')
    stamp(5, [0]); stamp(4, [2])
    A("v_max3_f32 v62, v67, v71, v75\nv_max_f32 v62, v62, v79")
    A("v_mov_b32 v63, v62\nv_permlane32_swap_b32 v62, v63\nv_max_f32 v62, v62, v63\nv_mov_b32 v63, v62\nv_permlane16_swap_b32 v62, v63\nv_max_f32 v62, v62, v63")
    for i in range(4): A(f"v_sub_f32 v{66+4*i}, v{67+4*i}, v62")
    for i in range(4): A(f"v_exp_f32 v{66+4*i}, v{66+4*i}")
    A("v_pk_mul_f32 v[52:53], v[64:65], v[66:67] op_sel_hi:[1,0]\nv_add_f32 v54, v66, v70")
    for i in range(1, 4): A(f"v_pk_fma_f32 v[52:53], {vr(64+4*i,2)}, {vr(66+4*i,2)}, v[52:53] op_sel_hi:[1,0,1]")
    A("v_add_f32 v55, v74, v78\nv_add_f32 v54, v54, v55")
    xrow([54, 52, 53], 56)
    A("v_rcp_f32 v54, v54\nv_pk_mul_f32 v[52:53], v[52:53], v[54:55] op_sel_hi:[1,0]\nv_cvt_pk_bf16_f32 v52, v52, v53")
    for g in range(4):
        for t in range(4): A(f"v_mov_b32_dpp v{AO+t}, v52 row_newbcast:{4*g+t} row_mask:{hex(1<<g)} bank_mask:0xf")
    mfmatile(D, AO, WT, True)
    A("s_mov_b64 exec, 0xffff")
    row0_write(29, D, 0, 0)
    A("s_mov_b64 exec, -1\ns_waitcnt lgkmcnt(0)")
    A("s_barrier")
    stamp(5, [2])
    A("s_cmp_eq_u32 s4, 0\ns_cbranch_scc0 L_fin")
    for i in range(4): A(f"ds_read_b64 {vr(XA+2*i,2)}, v28 offset:{L_YR+512*i}")
    A("s_waitcnt lgkmcnt(0)")
    A(f"v_pk_add_f32 {vr(XA,2)}, {vr(XA,2)}, {vr(XA+2,2)}\nv_pk_add_f32 {vr(XA+4,2)}, {vr(XA+4,2)}, {vr(XA+6,2)}\nv_mov_b32 v{XA+2}, {TAG}\nv_pk_add_f32 {vr(XA,2)}, {vr(XA,2)}, {vr(XA+4,2)}")
    A(f"global_store_dwordx4 v25, {vr(XA,4)}, s[30:31] sc1")
    A("s_branch L_end")
    A("L_fin:")
    A("s_cmp_eq_u32 s4, 1\ns_cbranch_scc0 L_bump\ns_cmp_lt_u32 s2, 128\ns_cbranch_scc0 L_end")
    poll("p2", [(f"global_load_dwordx4 v[16:19], v{H2A}, s[30:31] sc1", 18), (f"global_load_dwordx4 v[20:23], v{H2A+1}, s[30:31] sc1", 22)], psleep)
    A("v_pk_add_f32 v[16:17], v[16:17], v[20:21]\nv_permlane32_swap_b32 v16, v17\nv_add_f32 v8, v16, v17")
    A("v_mov_b32 v9, v8\nv_permlane16_swap_b32 v8, v9\nv_add_f32 v8, v8, v9")
    for n_ in (4, 8): A(f"v_add_f32_dpp v8, v8, v8 row_ror:{n_} row_mask:0xf bank_mask:0xf")
    rbf(8)
    A(f"v_mul_f32 v8, v8, v{G}"); rbf(8)
    A(f"v_add_f32 v8, v8, v{XV}\nv_cvt_pk_bf16_f32 v8, v8, v8")
    A("s_mov_b32 exec_lo, 15\ns_mov_b32 exec_hi, 15")
    A(f"global_store_short v{OA}, v8, s[26:27]")
    A("s_branch L_end")
    A("L_bump:")
    A("s_cmp_eq_u32 s4, 2\ns_cbranch_scc0 L_end\ns_cmp_eq_u32 s2, 255\ns_cbranch_scc0 L_end")
    A(f"v_lshlrev_b32 v4, 14, v1\nv_add_u32 v4, {WS_H2}, v4")
    poll("p3", [("global_load_dwordx4 v[16:19], v4, s[30:31] sc1", 18)], 1, [0xffff])
    A(f"s_mov_b64 exec, 1\nv_mov_b32 v4, {WS_E}\nglobal_store_dword v4, v50, s[30:31] sc1")
    A("L_end:")
    if stamps:
        A("s_waitcnt vmcnt(0)")
        stamp(6)
        A("L_stamps:")
        if leak and leak[0] in "dD":
            i_, j_ = int(leak[1]), int(leak[2])
            A("s_waitcnt lgkmcnt(0)\ns_cmp_ge_u32 s3, 4\ns_cbranch_scc0 L_exit")
            if leak[0] == "D": A("s_cmp_eq_u32 s3, 5\ns_cbranch_scc0 L_exit\ns_cmp_lt_u32 s2, 128\ns_cbranch_scc0 L_exit")
            A(f"s_sub_u32 s56, s{64+2*j_}, s{64+2*i_}\ns_mul_i32 s56, s56, 10\ns_min_u32 s56, s56, 6000\ns_sub_u32 s56, 12000, s56")
            A(f"L_leak:\ns_sleep 4\ns_memrealtime s[54:55]\ns_waitcnt lgkmcnt(0)\ns_sub_u32 s54, s54, s64\ns_cmp_lt_u32 s54, s56\ns_cbranch_scc1 L_leak")
        elif leak:
            role, idx = leak[0], int(leak[1])
            A("s_waitcnt lgkmcnt(0)")
            A("s_cmp_ge_u32 s3, 4\ns_cbranch_scc%d L_exit" % (1 if role == "s" else 0))
            if len(leak) > 2: A(f"s_cmp_eq_u32 s2, {int(leak[2:])}\ns_cbranch_scc0 L_exit")
            A(f"L_leak:\ns_sleep 4\ns_memrealtime s[54:55]\ns_waitcnt lgkmcnt(0)\ns_sub_u32 s54, s54, s{64+2*idx}\ns_cmp_lt_u32 s54, 6000\ns_cbranch_scc1 L_leak")
        else:
            A("s_getreg_b32 s78, hwreg(HW_REG_XCC_ID)\ns_mov_b32 s79, 0")
            A("s_waitcnt lgkmcnt(0)\ns_mov_b64 exec, 1\ns_lshl_b32 s54, s2, 3\ns_add_u32 s54, s54, s3\ns_lshl_b32 s54, s54, 6\ns_add_u32 s54, s54, 0x10000000\nv_mov_b32 v4, s54")
            for i in range(4):
                for k in range(4): A(f"v_mov_b32 v{8+k}, s{64+4*i+k}")
                A(f"global_store_dwordx4 v4, v[8:11], s[30:31] offset:{16*i}")
    A("L_exit:")
    A("s_endpgm")
    A.check_all_edges()
    out = HEADER
    out += f"; @launch grid=(256,1,1) block=(512,1,1) lds={L_SIZE}\n"
    out += f'.amdgcn_target "amdgcn-amd-amdhsa--gfx950"\n.text\n.globl {NAME}_kernel\n.p2align 8\n.type {NAME}_kernel,@function\n'
    out += A.text()
    out += f""".section .rodata,"a"
.p2align 6
.amdhsa_kernel {NAME}_kernel
  .amdhsa_next_free_vgpr 244
  .amdhsa_next_free_sgpr 100
  .amdhsa_accum_offset 244
  .amdhsa_group_segment_fixed_size 0
  .amdhsa_kernarg_size 96
  .amdhsa_user_sgpr_count 2
  .amdhsa_user_sgpr_kernarg_segment_ptr 1
  .amdhsa_system_sgpr_workgroup_id_x 1
  .amdhsa_float_denorm_mode_32 3
.end_amdhsa_kernel
"""
    return out

if __name__ == "__main__":
    ap = argparse.ArgumentParser()
    ap.add_argument("out"); ap.add_argument("--stamps", action="store_true"); ap.add_argument("--nomimic", action="store_true")
    ap.add_argument("--thr", type=int, default=4); ap.add_argument("--sset", type=int, default=0); ap.add_argument("--qsleep", type=int, default=0); ap.add_argument("--psleep", type=int, default=0); ap.add_argument("--noffn", action="store_true"); ap.add_argument("--R", type=int, default=16); ap.add_argument("--rot", type=int, default=2); ap.add_argument("--trk", type=int, default=2); ap.add_argument("--q0sleep", type=int, default=0); ap.add_argument("--exp", default=""); ap.add_argument("--RV", type=int, default=4); ap.add_argument("--lim", type=int, default=-1); ap.add_argument("--ctl", default=""); ap.add_argument("--pol", default="nnn"); ap.add_argument("--leak", default=""); ap.add_argument("--fq", type=int, default=8); ap.add_argument("--fh", type=int, default=16); ap.add_argument("--wo2", type=int, default=7); ap.add_argument("--b0late", action="store_true"); ap.add_argument("--toff", type=int, default=700); ap.add_argument("--krate", type=int, default=57); ap.add_argument("--prothr", type=int, default=None)
    a = ap.parse_args()
    ck = {}
    if a.ctl:
        p = a.ctl.split("/")
        ck = dict(ctl=True, ctl_thr=[int(x) for x in p[0].split(",")], ctl_d=[int(x) for x in p[1].split(",")], ctl_int=int(p[2]), ctl_t0=int(p[3]), ctl_tab=[int(c, 16) for c in p[4]])
    open(a.out, "w").write(gen(stamps=a.stamps, mimic=not a.nomimic, thr=a.thr, sset=a.sset, qsleep=a.qsleep, psleep=a.psleep, noffn=a.noffn, R=a.R, rot=a.rot, trk=a.trk, q0sleep=a.q0sleep, exp=a.exp, RV=a.RV, lim=a.lim, pol=a.pol, leak=a.leak, fq=a.fq, fh=a.fh, wo2=a.wo2, b0first=not a.b0late, toff=a.toff, krate=a.krate, prothr=a.prothr, **ck))
```
